```python
import torch

def _softmax(x, axis=-1):
    return torch.softmax(x, dim=axis)
def _gelu(x):
    return torch.nn.functional.gelu(x, approximate="tanh")
def _silu(x):
    return torch.nn.functional.silu(x)
def _sigmoid(x):
    return torch.sigmoid(x)
def _layernorm(x, axis=-1, eps=1e-5):
    m = x.mean(dim=axis, keepdim=True)
    v = x.var(dim=axis, keepdim=True, unbiased=False)
    return (x - m) / torch.sqrt(v + eps)
def _scatter_add(tgt, idx, src, axis=0):
    return tgt.clone().index_add_(axis, idx, src)
def _segment_sum(src, seg, n):
    out = torch.zeros((n,) + src.shape[1:], dtype=src.dtype)
    return out.index_add_(0, seg, src)
def _pad(x, pw):
    flat = tuple(v for pair in reversed(pw) for v in pair)
    return torch.nn.functional.pad(x, flat)

kernel_name = 'sequential_preLN__linear_attn_block__dense_activation_mish__prompt'

def setup_inputs():

    _w = (lambda a: (lambda t: t.to(torch.bfloat16) if t.is_floating_point() else t)(torch.as_tensor(a)))
    def _A_setup():
        B, S, D = 1, 2048, 512
        return {
            "x": _w((lambda *s: torch.randn(*s, dtype=torch.bfloat16) * 0.05)(B, S, D)),
            "wqkv": _w((lambda *s: torch.randn(*s, dtype=torch.bfloat16) * 0.05)(D, 3 * D)),
            "wo": _w((lambda *s: torch.randn(*s, dtype=torch.bfloat16) * 0.05)(D, D)),
        }
    _A_in = _A_setup()

    def _B_setup():
        B, S, D, F = 1, 2048, 512, 1376
        return {
            "x": _w((lambda *s: torch.randn(*s, dtype=torch.bfloat16) * 0.05)(B, S, D)),
            "w1": _w((lambda *s: torch.randn(*s, dtype=torch.bfloat16) * 0.8)(D, F) * (D ** -0.5)),
            "b1": _w((lambda *s: torch.randn(*s, dtype=torch.bfloat16) * 0.2)(F)),
            "w2": _w((lambda *s: torch.randn(*s, dtype=torch.bfloat16) * 0.1)(F, D) * (F ** -0.5)),
        }
    _B_in = _B_setup()

    return {
        "A_x": _A_in["x"],
        "A_wqkv": _A_in["wqkv"],
        "A_wo": _A_in["wo"],
        "B_x": _B_in["x"],
        "B_w1": _B_in["w1"],
        "B_b1": _B_in["b1"],
        "B_w2": _B_in["w2"],
    }

def reference(A_x, A_wqkv, A_wo, B_x, B_w1, B_b1, B_w2):
    def _A_ref(x, wqkv, wo):
        B, S, D = x.shape
        H = 32; Dh = D // H
        qkv = (lambda x, *d: x.permute(*d))((x @ wqkv).reshape(B, S, 3, H, Dh), 2, 0, 3, 1, 4)
        q, k, v = qkv[0], qkv[1], qkv[2]
        phi = lambda t: torch.where(t > 0, t + 1, torch.exp(t)) + 1e-6
        pq, pk = phi(q), phi(k)
        kv = torch.einsum("bhsd,bhse->bhde", pk, v)
        z = torch.einsum("bhsd->bhd", pk)
        num = torch.einsum("bhqd,bhde->bhqe", pq, kv)
        den = torch.einsum("bhqd,bhd->bhq", pq, z)[..., None] + 1e-6
        o = num / den
        return (lambda x, *d: x.permute(*d))(o, 0, 2, 1, 3).reshape(B, S, D) @ wo

    def _B_ref(x, w1, b1, w2):
        h = torch.einsum("bsd,df->bsf", x, w1) + b1
        sp = torch.log1p(torch.exp(-torch.abs(h))) + torch.where(h > 0, h, torch.zeros_like(h))
        act = h * torch.tanh(sp)
        return torch.einsum("bsf,fd->bsd", act, w2)

    x = A_x
    h = x + _A_ref(_layernorm(x, axis=-1), A_wqkv, A_wo)
    h2 = h + _B_ref(_layernorm(h, axis=-1), B_w1, B_b1, B_w2)
    return h2
```

```python
import re

_RANGE = re.compile(r'^(-?\|?)([vsa])\[(\d+):(\d+)\]\|?$')
_SINGLE = re.compile(r'^(-?\|?)([vsa])(\d+)\|?$')

TRANS = ('v_exp_f32', 'v_log_f32', 'v_rcp_f32', 'v_rsq_f32', 'v_sqrt_f32', 'v_sin_f32', 'v_cos_f32')


def regs_of(tok):
    tok = tok.strip()
    tok = tok.replace('abs(', '').replace(')', '')
    m = _RANGE.match(tok)
    if m:
        return {(m.group(2), i) for i in range(int(m.group(3)), int(m.group(4)) + 1)}
    m = _SINGLE.match(tok)
    if m:
        return {(m.group(2), int(m.group(3)))}
    if tok == 'vcc':
        return {('s', 106), ('s', 107)}
    if tok == 'vcc_lo':
        return {('s', 106)}
    if tok == 'm0':
        return {('m', 0)}
    if tok == 'exec':
        return {('e', 0)}
    return set()


class Ins:
    __slots__ = ('text', 'op', 'dst', 'src', 'kind', 'passes', 'srcC', 'nops', 'is_lds_dma', 'wide_store', 'sgemm')

    def __init__(self, text):
        self.text = text
        t = text.split(';')[0].strip()
        self.op = t.split()[0] if t else ''
        rest = t[len(self.op):].strip()
        toks = []
        for part in rest.split(','):
            part = part.strip()
            if not part:
                continue
            toks.append(part.split()[0] if not part.startswith('-|') else part.split()[0])
        mods = rest
        self.dst = set(); self.src = set(); self.kind = 'other'; self.passes = 0; self.srcC = set()
        self.nops = 1; self.is_lds_dma = False; self.wide_store = False; self.sgemm = False
        op = self.op
        if op == 's_nop':
            self.nops = int(toks[0], 0) + 1
            self.kind = 'nop'
        elif op.startswith('v_mfma'):
            self.kind = 'mfma'
            self.dst = regs_of(toks[0])
            self.src = regs_of(toks[1]) | regs_of(toks[2])
            self.srcC = regs_of(toks[3])
            if '32x32' in op:
                self.passes = 8
            else:
                self.passes = 4
            if op.endswith('_f32') and ('x4_f32' in op or 'x2_f32' in op):
                self.sgemm = True
                self.passes = 8 if '16x16x4' in op else 16
        elif op.startswith('v_'):
            self.kind = 'valu'
            if op.startswith('v_cmp'):
                self.dst = regs_of(toks[0]);
                for x in toks[1:]: self.src |= regs_of(x)
            elif op in ('v_readfirstlane_b32', 'v_readlane_b32'):
                self.dst = regs_of(toks[0])
                for x in toks[1:]: self.src |= regs_of(x)
            elif op.startswith('v_add_co') or op.startswith('v_addc_co') or op.startswith('v_sub_co'):
                self.dst = regs_of(toks[0]) | regs_of(toks[1])
                for x in toks[2:]: self.src |= regs_of(x)
            elif op.startswith('v_permlane') and 'swap' in op:
                self.dst = regs_of(toks[0]) | regs_of(toks[1])
                self.src = set(self.dst)
            else:
                self.dst = regs_of(toks[0])
                for x in toks[1:]: self.src |= regs_of(x)
                if op.startswith('v_fmac') or op.startswith('v_dot2c') or op.startswith('v_pk_fmac'):
                    self.src |= self.dst
                if op.startswith('v_cndmask') and len(toks) == 3:
                    self.src |= regs_of('vcc')
        elif op.startswith('ds_'):
            self.kind = 'ds'
            if op.startswith('ds_read') or op.startswith('ds_bpermute') or op.startswith('ds_swizzle') or op.startswith('ds_permute'):
                self.dst = regs_of(toks[0])
                for x in toks[1:]: self.src |= regs_of(x)
            else:
                for x in toks: self.src |= regs_of(x)
        elif op.startswith('buffer_') or op.startswith('global_'):
            self.kind = 'vmem'
            if op in ('buffer_inv', 'buffer_wbl2'):
                pass
            elif re.search(r'\blds\b', mods):
                self.is_lds_dma = True
                for x in toks: self.src |= regs_of(x)
                self.src |= {('m', 0)}
            elif 'load' in op:
                self.dst = regs_of(toks[0])
                for x in toks[1:]: self.src |= regs_of(x)
            else:
                for x in toks: self.src |= regs_of(x)
                if 'atomic' in op and re.search(r'\bsc0\b', mods):
                    self.dst = regs_of(toks[0])
                if 'store' in op and ('x4' in op or 'x3' in op):
                    self.wide_store = True
        elif op.startswith('s_'):
            self.kind = 'salu'
            if op.startswith('s_cmp') or op in ('s_waitcnt', 's_barrier', 's_endpgm', 's_branch', 's_setprio', 's_sleep') or op.startswith('s_cbranch'):
                for x in toks: self.src |= regs_of(x)
            elif op.startswith('s_load') or op.startswith('s_buffer_load'):
                self.kind = 'smem'
                self.dst = regs_of(toks[0])
                for x in toks[1:]: self.src |= regs_of(x)
            elif 'saveexec' in op:
                self.dst = regs_of(toks[0]) | {('e', 0)}
                for x in toks[1:]: self.src |= regs_of(x)
            else:
                self.dst = regs_of(toks[0])
                for x in toks[1:]: self.src |= regs_of(x)


def vset(s):
    return {r for r in s if r[0] in 'va'}


def sset(s):
    return {r for r in s if r[0] == 's'}


def required(prev, cur):
    need = 0
    if prev.kind == 'mfma':
        D = prev.dst
        p = prev.passes
        if cur.kind == 'mfma':
            if cur.src & D:
                need = max(need, ({4: 6, 8: 10, 16: 18}[p] if prev.sgemm else {4: 8, 8: 12, 16: 20}[p]))
            if cur.srcC & D:
                if cur.srcC == D and cur.passes == p and cur.sgemm == prev.sgemm:
                    pass
                else:
                    need = max(need, {4: 6, 8: 10, 16: 18}[p])
            if cur.dst & D and not (cur.srcC == D and cur.dst == D):
                need = max(need, {4: 8, 8: 12, 16: 20}[p])
        elif cur.kind in ('valu', 'vmem', 'ds'):
            if (cur.src | cur.dst) & D:
                need = max(need, ({4: 6, 8: 10, 16: 18}[p] if prev.sgemm else {4: 8, 8: 12, 16: 20}[p]))
            if cur.kind == 'valu' and (cur.dst & prev.srcC) and not prev.sgemm:
                need = max(need, {4: 3, 8: 7, 16: 15}[p])
    if prev.kind == 'valu':
        W = prev.dst
        Wv = vset(W); Ws = sset(W)
        isdot = prev.op.startswith('v_dot')
        if cur.kind == 'mfma' and (cur.src | cur.srcC) & Wv:
            need = max(need, 3 if isdot else 2)
        if prev.op in TRANS and cur.kind in ('valu', 'vmem', 'ds') and cur.op not in TRANS and (cur.src & Wv):
            need = max(need, 1)
        if prev.op in TRANS and cur.op in TRANS and (cur.src & Wv):
            need = max(need, 1)
        if isdot and cur.kind in ('valu', 'vmem', 'ds'):
            if (cur.src | cur.dst) & Wv:
                if cur.op == prev.op and cur.dst == prev.dst:
                    pass
                else:
                    need = max(need, 3)
        if Ws:
            if cur.kind == 'valu' and (cur.src & Ws):
                need = max(need, 4 if cur.op in ('v_readlane_b32', 'v_writelane_b32') else 2)
            if cur.kind == 'vmem' and (cur.src & Ws):
                need = max(need, 5)
            if cur.kind in ('salu', 'smem') and (cur.src & Ws):
                need = max(need, 1)
        if cur.op in ('v_readfirstlane_b32', 'v_readlane_b32') and (cur.src & Wv):
            need = max(need, 1)
        if cur.op.startswith('v_permlane') and (cur.src & Wv):
            need = max(need, 2)
        if 'dpp' in cur.text and (cur.src & Wv):
            need = max(need, 2)
    if prev.kind == 'salu' and ('m', 0) in prev.dst and cur.is_lds_dma:
        need = max(need, 1)
    if prev.kind == 'vmem' and prev.wide_store:
        if cur.kind == 'valu' and (cur.dst & vset(prev.src)):
            need = max(need, 2)
        elif cur.dst & vset(prev.src):
            need = max(need, 1)
    return need


class Asm:
    def __init__(self):
        self.out = []
        self.hist = []

    def raw(self, s):
        self.out.append(s)

    def label(self, name):
        self.flush_hazards()
        self.out.append(name + ':')
        self.hist = []

    def flush_hazards(self, n=None):
        dist = 0
        worst = 0
        for p in reversed(self.hist):
            if dist >= 20:
                break
            w = 0
            if p.kind == 'mfma':
                w = {4: 8, 8: 12, 16: 20}[p.passes]
            elif p.kind == 'valu':
                w = 5 if sset(p.dst) else 3
            elif p.kind == 'salu' and ('m', 0) in p.dst:
                w = 1
            elif p.kind == 'vmem' and p.wide_store:
                w = 2
            worst = max(worst, w - dist)
            dist += p.nops
        self._nop(worst)

    def _nop(self, n):
        while n > 0:
            k = min(n, 16)
            ins = Ins(f's_nop {k - 1}')
            self.out.append('    ' + ins.text)
            self.hist.append(ins)
            n -= k

    def __call__(self, text):
        for line in text.split('\n'):
            line = line.strip()
            if not line:
                continue
            if line.startswith(';'):
                self.out.append('    ' + line)
                continue
            if line.endswith(':'):
                self.label(line[:-1])
                continue
            self.emit(line)

    def emit(self, line):
        cur = Ins(line)
        m = re.search(r'offset:(\d+)', line)
        if m:
            off = int(m.group(1))
            if cur.kind == 'vmem':
                assert off < 4096, line
            elif cur.kind == 'ds':
                assert off < 65536, line
        dist = 0
        need = 0
        for p in reversed(self.hist):
            if dist >= 24:
                break
            r = required(p, cur)
            if r - dist > need:
                need = r - dist
            dist += p.nops
        if need > 0:
            self._nop(need)
        self.out.append('    ' + line)
        self.hist.append(cur)
        if len(self.hist) > 64:
            self.hist = self.hist[-40:]
        if cur.op.startswith('s_cbranch') or cur.op == 's_branch':
            pass

    def branch(self, line):
        self.flush_hazards()
        self.emit(line)

    def text(self):
        return '\n'.join(self.out) + '\n'


def kernel_header(name):
    return f""".globl {name}
.p2align 8
.type {name},@function
{name}:
"""


def kernel_desc(name, nvgpr, nsgpr=100):
    acc = (nvgpr + 3) // 4 * 4
    return f""".p2align 6
.amdhsa_kernel {name}
  .amdhsa_next_free_vgpr {nvgpr}
  .amdhsa_next_free_sgpr {nsgpr}
  .amdhsa_accum_offset {acc}
  .amdhsa_group_segment_fixed_size 0
  .amdhsa_kernarg_size 80
  .amdhsa_user_sgpr_count 2
  .amdhsa_user_sgpr_kernarg_segment_ptr 1
  .amdhsa_system_sgpr_workgroup_id_x 1
.end_amdhsa_kernel
"""


class DSQ:
    def __init__(self, a):
        self.a = a
        self.q = []

    def issue(self, tag, line):
        self.a(line)
        self.q.append(tag)

    def wait(self, tag):
        idx = max([i for i, t in enumerate(self.q) if t == tag], default=-1)
        if idx < 0:
            return
        n = len(self.q) - 1 - idx
        if n <= 15:
            self.a(f"s_waitcnt lgkmcnt({n})")
        else:
            self.a("s_waitcnt lgkmcnt(15)")
            n = 15
            idx = len(self.q) - 1 - 15
        self.q = self.q[idx + 1:]

    def drain(self):
        self.a("s_waitcnt lgkmcnt(0)")
        self.q = []
```

```python
import sys, os
from asmlib import Asm, DSQ, kernel_header, kernel_desc

KVACC = 0
KV_HEAD = 1088
CS1 = 0x9000
PQ = 0x10000
HH = PQ + 0x200000
ACT = HH + 0x200000
STAT2 = ACT + 128 * 43 * 1024
WS_USED = STAT2 + 0x40000

LOG2E = 0x3FB8AA3B
K3_LA = int(os.environ.get("K3_LA", "10"))
K4_LA = int(os.environ.get("K4_LA", "8"))
ONES_BF16 = 0x3F803F80

STAMPS = os.environ.get("STAMPS", "")
STAMP_OFF = 0xA00000


def stamp(a, kname, i):
    if kname not in STAMPS:
        return
    a(f"s_memrealtime s[{64+2*i}:{65+2*i}]")
    a("s_waitcnt lgkmcnt(0)")


def stamp_flush(a, kname, kidx, n):
    if kname not in STAMPS:
        return
    a("s_cmp_lg_u32 s12, 0")
    a.branch(f"s_cbranch_scc1 {kname}_NOSTAMP")
    a("s_mov_b32 s96, s10\ns_and_b32 s97, s11, 0xffff\ns_mov_b32 s98, 0x2000000\ns_mov_b32 s99, 0x20000")
    a("s_mov_b64 exec, 1")
    a(f"s_lshl_b32 s63, s2, 7")
    a(f"s_add_u32 s63, s63, {STAMP_OFF + kidx*0x10000}")
    a("v_mov_b32 v4, 0")
    for i in range(n):
        a(f"v_mov_b32 v2, s{64+2*i}")
        a(f"v_mov_b32 v3, s{65+2*i}")
        a(f"buffer_store_dwordx2 v[2:3], v4, s[96:99], s63 offen offset:{i*8}")
    a(f"{kname}_NOSTAMP:")


def srd(a, s, base_lo, base_hi, nbytes):
    a(f"s_mov_b32 s{s}, s{base_lo}")
    a(f"s_and_b32 s{s+1}, s{base_hi}, 0xffff")
    a(f"s_mov_b32 s{s+2}, {nbytes}")
    a(f"s_mov_b32 s{s+3}, 0x20000")


def vr(base, n=4):
    return f"v[{base}:{base+n-1}]"


def preamble(a):
    a("v_lshrrev_b32 v4, 6, v0")
    a("v_and_b32 v1, 63, v0")
    a("v_readfirstlane_b32 s12, v4")
    a("v_and_b32 v2, 15, v1")
    a("v_lshrrev_b32 v3, 4, v1")


def stream3(a, nsteps, loads, ntiles, rd, mm, CH, LA, ring=None, setup=None, on_chunk=None, issued=None):
    issued = [] if issued is None else issued
    pending = list(loads)
    dsq = DSQ(a)

    def issue_one():
        need, fn = pending.pop(0); fn(); issued.append(need)

    def wait_for(X):
        idx = max([i for i, t in enumerate(issued) if t is not None and t <= X], default=-1)
        a(f"s_waitcnt vmcnt({min(63, len(issued) - 1 - idx)})")

    while pending and pending[0][0] <= LA - 1:
        issue_one()
    if setup:
        setup()
    nch = (nsteps + CH - 1) // CH
    for c in range(nch):
        s0 = c * CH; s1 = min(nsteps, s0 + CH)
        wait_for(min(nsteps - 1, s1))
        a("s_barrier")
        if on_chunk:
            on_chunk(c, issued)
        limit = s1 - 1 + LA
        if c == 0:
            for t in range(ntiles):
                rd(dsq, 0, t)
        for s in range(s0, s1):
            for t in range(ntiles):
                dsq.wait((s, t))
                mm(s, t)
                if s + 1 < nsteps:
                    rd(dsq, s + 1, t)
                if pending and pending[0][0] <= limit:
                    if ring is not None:
                        assert pending[0][0] < c * CH + ring
                    issue_one()
        while pending and pending[0][0] <= limit:
            if ring is not None:
                assert pending[0][0] < c * CH + ring
            issue_one()
    assert not pending
    return issued, wait_for


def b_read_bases(a, vdst, vT0, vT1, vT2, mode):
    a(f"v_lshrrev_b32 v{vT0}, 2, v2")
    a(f"v_and_b32 v{vT1}, 3, v1")
    a(f"v_and_b32 v{vT2}, 1, v3")
    for rd in range(2):
        d = vdst + rd * 2
        if mode == 'nat':
            a(f"v_lshl_add_u32 v{d}, v3, 2, v{vT0}")
            if rd:
                a(f"v_add_u32 v{d}, 16, v{d}")
            a(f"v_lshlrev_b32 v{d}, 6, v{d}")
            a(f"v_xor_b32 v{d+1}, v{vT1}, v{vT2}")
        else:
            a(f"v_xor_b32 v{d+1}, {rd}, v{vT2}")
            a(f"v_lshl_add_u32 v{d}, v{d+1}, 2, v{vT0}")
            a(f"v_lshl_add_u32 v{d}, v3, 3, v{d}")
            a(f"v_lshlrev_b32 v{d}, 6, v{d}")
            a(f"v_xor_b32 v{d+1}, v{vT1}, v{d+1}")
        a(f"v_lshl_add_u32 v{d}, v{d+1}, 4, v{d}")
        a(f"v_and_b32 v{d+1}, 1, v1")
        a(f"v_lshl_add_u32 v{d}, v{d+1}, 3, v{d}")
        a(f"v_xor_b32 v{d+1}, 8, v{d}")


def b_dma_voff(a, vdst, vT0, vT1, pitch):
    a(f"v_lshrrev_b32 v{vT0}, 2, v1")
    a(f"v_mul_u32_u24 v{vT0}, {pitch}, v{vT0}")
    a(f"v_and_b32 v{vT1}, 1, v3")
    a(f"v_and_b32 v{vdst}, 3, v1")
    a(f"v_xor_b32 v{vT1}, v{vT1}, v{vdst}")
    a(f"v_lshl_add_u32 v{vdst}, v{vT1}, 4, v{vT0}")


def prefetch(a, srdbase, soff, nkb, vaddr, vtmp0, ntmp=8):
    for i in range(nkb):
        if i % 4 == 0 and i:
            a(f"s_add_u32 s{soff}, s{soff}, 4096")
        a(f"buffer_load_dwordx4 {vr(vtmp0 + (i % ntmp)*4)}, v{vaddr}, s[{srdbase}:{srdbase+3}], s{soff} offen offset:{(i%4)*1024}")


def gen_k1():
    a = Asm()
    A_BASE = 98304
    SCR = A_BASE
    CS_OFF = SCR
    PQX_OFF = SCR + 2048
    KVX_OFF = SCR + 12288
    ZX_OFF = SCR + 20480
    CW_OFF = SCR + 22528

    a("s_cmp_ge_u32 s2, 256")
    a("s_cbranch_scc1 K1_END")
    stamp(a, "k1", 0)
    a("s_load_dwordx4 s[4:7], s[0:1], 0")
    a("s_load_dwordx4 s[8:11], s[0:1], 64")
    a("s_load_dwordx2 s[50:51], s[0:1], 16")
    a("s_load_dwordx2 s[52:53], s[0:1], 32")
    preamble(a)
    a("s_and_b32 s40, s2, 7")
    a("s_lshr_b32 s17, s2, 3")
    a("s_lshr_b32 s13, s40, 1")
    a("s_lshl_b32 s13, s13, 2")
    a("s_and_b32 s42, s17, 3")
    a("s_add_u32 s13, s13, s42")
    a("s_and_b32 s14, s40, 1")
    a("s_lshl_b32 s14, s14, 3")
    a("s_lshr_b32 s42, s17, 2")
    a("s_add_u32 s14, s14, s42")
    a("s_lshr_b32 s15, s12, 1")
    a("s_and_b32 s16, s12, 1")
    a("s_waitcnt lgkmcnt(0)")
    srd(a, 20, 4, 5, 2048 * 1024)
    srd(a, 24, 6, 7, 512 * 3072)
    srd(a, 28, 10, 11, WS_USED)
    srd(a, 32, 8, 9, 256)
    srd(a, 84, 50, 51, 512 * 1024)
    srd(a, 88, 52, 53, 512 * 2752)
    srd(a, 92, 52, 53, 512 * 2752)
    a("s_cmp_eq_u32 s12, 0")
    a("s_cselect_b32 s86, 0, s86")
    a("s_cselect_b32 s90, 0, s90")
    a("s_cmp_ge_u32 s2, 43")
    a("s_cselect_b32 s94, 0, s94")
    a("s_cmp_eq_u32 s12, 7")
    a("s_cselect_b32 s38, 256, 0")
    a("s_mov_b32 s36, s8\ns_and_b32 s37, s9, 0xffff\ns_mov_b32 s39, 0x20000")
    a("s_lshl_b32 s40, s14, 2")
    a("v_mov_b32 v15, s40")
    a("v_mov_b32 v21, 1")
    a("s_mov_b64 exec, 1")
    a("buffer_atomic_add v21, v15, s[36:39], 0 offen sc0")
    a("s_mov_b64 exec, -1")
    vA0, vA1, vB, vAr0, vAr1, vBr0, vBr1, vT0, vT1, vT2 = 5, 6, 7, 8, 9, 10, 11, 12, 13, 14
    vONE = 16; vONEF = 20; vSUM = 22; vCS = 26
    ACC = 32; FA = 56; FB = 72
    a(f"v_lshrrev_b32 v{vT0}, 3, v1")
    a(f"s_lshl_b32 s40, s12, 4")
    a(f"v_add_u32 v{vT0}, s40, v{vT0}")
    a(f"v_lshlrev_b32 v{vT0}, 10, v{vT0}")
    a(f"v_and_b32 v{vT1}, 7, v1")
    a(f"v_xor_b32 v{vT1}, v{vT1}, v3")
    a(f"v_lshl_add_u32 v{vA0}, v{vT1}, 4, v{vT0}")
    a(f"v_xor_b32 v{vT1}, 4, v{vT1}")
    a(f"v_lshl_add_u32 v{vA1}, v{vT1}, 4, v{vT0}")
    a(f"v_add_u32 v{vA1}, {8*1024 - 1024}, v{vA1}")
    a(f"v_lshrrev_b32 v{vT0}, 2, v1")
    a(f"v_mul_u32_u24 v{vT0}, 3072, v{vT0}")
    a(f"v_lshrrev_b32 v{vT1}, 5, v1")
    a(f"v_lshlrev_b32 v{vT1}, 1, v{vT1}")
    a(f"v_and_b32 v{vT2}, 3, v1")
    a(f"v_xor_b32 v{vT1}, v{vT1}, v{vT2}")
    a(f"v_lshl_add_u32 v{vB}, v{vT1}, 4, v{vT0}")
    a("s_lshl_b32 s44, s13, 17")
    a("s_lshl_b32 s45, s14, 6")
    a("s_lshl_b32 s46, s12, 11")
    a(f"s_add_u32 s46, s46, {A_BASE}")
    for j in range(3):
        a(f"s_add_u32 s40, s12, {8*j}")
        a(f"s_mul_i32 s41, s40, 43691")
        a(f"s_lshr_b32 s41, s41, 17")
        a(f"s_mul_i32 s42, s41, 3")
        a(f"s_sub_u32 s42, s40, s42")
        a(f"s_mul_i32 s{54+2*j}, s41, {16*3072}")
        a(f"s_lshl_b32 s43, s42, 10")
        a(f"s_add_u32 s{54+2*j}, s{54+2*j}, s43")
        a(f"s_add_u32 s{54+2*j}, s{54+2*j}, s45")
        a(f"s_lshl_b32 s{55+2*j}, s42, 15")
        a(f"s_lshl_b32 s43, s41, 10")
        a(f"s_add_u32 s{55+2*j}, s{55+2*j}, s43")

    def mkA(c):
        def f():
            st = c % 4
            a(f"s_add_u32 m0, s46, {st*16384}")
            a(f"s_add_u32 s48, s44, {c*128}")
            a(f"buffer_load_dwordx4 v{vA0}, s[20:23], s48 offen lds")
        def g():
            a(f"buffer_load_dwordx4 v{vA1}, s[20:23], s48 offen offset:1024 lds")
        return f, g

    def mkB(grp, j):
        def f():
            a(f"s_add_u32 m0, s{55+2*j}, {grp*8192}")
            a(f"s_add_u32 s49, s{54+2*j}, {grp*128*3072}")
            a(f"buffer_load_dwordx4 v{vB}, s[24:27], s49 offen lds")
        return f

    loads = []
    for c in range(8):
        f, g = mkA(c)
        loads.append((c, f)); loads.append((c, g))
        if c % 2 == 0:
            loads.append((c, mkB(c // 2, 0))); loads.append((c, mkB(c // 2, 1)))
        else:
            loads.append((c, mkB(c // 2, 2)))

    def setup(issued):
        a(f"s_lshl_b32 s40, s15, 12")
        a(f"s_add_u32 s40, s40, {A_BASE}")
        a(f"v_lshrrev_b32 v{vT0}, 1, v2")
        a(f"v_xor_b32 v{vT0}, v{vT0}, v3")
        a(f"v_lshlrev_b32 v{vT0}, 4, v{vT0}")
        a(f"v_lshl_add_u32 v{vT0}, v2, 7, v{vT0}")
        a(f"v_add_u32 v{vAr0}, s40, v{vT0}")
        a(f"v_xor_b32 v{vAr1}, 64, v{vAr0}")
        a(f"v_lshrrev_b32 v{vT0}, 2, v2")
        a(f"v_lshlrev_b32 v{vT0}, 6, v{vT0}")
        a(f"v_lshl_add_u32 v{vT0}, v3, 9, v{vT0}")
        a(f"v_bfe_u32 v{vT1}, v1, 1, 1")
        a(f"s_lshl_b32 s40, s16, 1")
        a(f"v_add_u32 v{vT1}, s40, v{vT1}")
        a(f"v_and_b32 v{vT2}, 1, v3")
        a(f"v_lshlrev_b32 v{vT2}, 1, v{vT2}")
        a(f"v_xor_b32 v{vT1}, v{vT1}, v{vT2}")
        a(f"v_lshl_add_u32 v{vT0}, v{vT1}, 4, v{vT0}")
        a(f"v_and_b32 v{vT1}, 1, v1")
        a(f"v_lshl_add_u32 v{vBr0}, v{vT1}, 3, v{vT0}")
        a(f"v_add_u32 v{vBr1}, 0x10000, v{vBr0}")
        for i in range(4):
            a(f"v_mov_b32 v{vONE+i}, {ONES_BF16:#x}")
        a(f"v_mov_b32 v{vONEF}, 1.0")
        for i in range(20):
            a(f"v_mov_b32 v{132+i}, 0")
        for i in range(24):
            a(f"v_mov_b32 v{ACC+i}, 0")
        stamp(a, "k1", 1)

    dsq = DSQ(a)
    S1 = 132; S2 = 136; CSA = 140

    def rd_a(kk, rt):
        buf = kk & 1
        c = kk >> 1; st = c % 4
        va = vAr0 if (kk & 1) == 0 else vAr1
        dsq.issue((kk, 'a', rt), f"ds_read_b128 {vr(FA + buf*8 + rt*4)}, v{va} offset:{st*16384 + rt*2048}")

    def rd_b(kk, seg):
        buf = kk & 1
        for rd in range(2):
            base = vBr0 if seg < 2 else vBr1
            off = (seg & 1) * 32768 + kk * 2048 + rd * 256 if seg < 2 else kk * 2048 + rd * 256
            dsq.issue((kk, 'b', seg), f"ds_read_b64_tr_b16 {vr(FB + buf*12 + seg*4 + rd*2, 2)}, v{base} offset:{off}")

    def read_frags(kk):
        rd_a(kk, 0); rd_b(kk, 0); rd_a(kk, 1); rd_b(kk, 1); rd_b(kk, 2)

    def compute(kk, nxt, extra=None):
        buf = kk & 1
        fa = [FA + buf * 8 + rt * 4 for rt in range(2)]
        fb = [FB + buf * 12 + seg * 4 for seg in range(3)]
        extra = extra or (lambda: None)
        dsq.wait((kk, 'b', 0))
        a(f"v_mfma_f32_16x16x32_bf16 {vr(ACC)}, {vr(fb[0])}, {vr(fa[0])}, {vr(ACC)}")
        if nxt: rd_a(kk + 1, 0)
        dsq.wait((kk, 'a', 1))
        a(f"v_mfma_f32_16x16x32_bf16 {vr(ACC + 4)}, {vr(fb[0])}, {vr(fa[1])}, {vr(ACC + 4)}")
        if nxt: rd_b(kk + 1, 0)
        extra()
        a(f"v_mfma_f32_16x16x32_bf16 {vr(S1)}, {vr(vONE)}, {vr(vXS)}, {vr(S1)}" if False else "")
        dsq.wait((kk, 'b', 1))
        a(f"v_mfma_f32_16x16x32_bf16 {vr(ACC + 8)}, {vr(fa[0])}, {vr(fb[1])}, {vr(ACC + 8)}")
        if nxt: rd_a(kk + 1, 1)
        a(f"v_mfma_f32_16x16x32_bf16 {vr(ACC + 12)}, {vr(fa[1])}, {vr(fb[1])}, {vr(ACC + 12)}")
        if nxt: rd_b(kk + 1, 1)
        extra()
        dsq.wait((kk, 'b', 2))
        a(f"v_mfma_f32_16x16x32_bf16 {vr(ACC + 16)}, {vr(fa[0])}, {vr(fb[2])}, {vr(ACC + 16)}")
        a(f"v_mfma_f32_16x16x32_bf16 {vr(ACC + 20)}, {vr(fa[1])}, {vr(fb[2])}, {vr(ACC + 20)}")
        if nxt: rd_b(kk + 1, 2)
        extra()
        a(f"s_cmp_lg_u32 s16, 0")
        a.emit(f"s_cbranch_scc1 K1_ST{kk}")
        a(f"v_mfma_f32_16x16x32_bf16 {vr(S1)}, {vr(vONE)}, {vr(fa[0])}, {vr(S1)}")
        a(f"v_mfma_f32_16x16x32_bf16 {vr(S2)}, {vr(fa[0])}, {vr(fa[0])}, {vr(S2)}")
        a.emit(f"s_branch K1_SU{kk}")
        a.raw(f"K1_ST{kk}:")
        a(f"v_mfma_f32_16x16x32_bf16 {vr(S1)}, {vr(vONE)}, {vr(fa[1])}, {vr(S1)}")
        a(f"v_mfma_f32_16x16x32_bf16 {vr(S2)}, {vr(fa[1])}, {vr(fa[1])}, {vr(S2)}")
        a.raw(f"K1_SU{kk}:")
        a(f"s_cmp_lg_u32 s15, {kk & 3}")
        a.emit(f"s_cbranch_scc1 K1_SK{kk}")
        for seg in range(3):
            a(f"v_mfma_f32_16x16x32_bf16 {vr(CSA + seg*4)}, {vr(vONE)}, {vr(fb[seg])}, {vr(CSA + seg*4)}")
        a.raw(f"K1_SK{kk}:")

    issued = [None]
    pending = list(loads)
    CSW = 100

    def issue_upto(limit):
        while pending and pending[0][0] <= limit:
            need, fn = pending.pop(0); fn(); issued.append(need)

    def wait_for(X):
        idx = max([i for i, t in enumerate(issued) if t is not None and t <= X], default=-1)
        a(f"s_waitcnt vmcnt({len(issued) - 1 - idx})")

    issue_upto(2)
    setup(issued)
    for c in range(8):
        wait_for(min(7, c + 1) if c > 0 else 0)
        a("s_barrier")
        if c == 0:
            issue_upto(3)
            read_frags(0)
            compute(0, True)
            wait_for(1)
            a("s_barrier")
            compute(1, True)
            continue
        if c == 1:
            a("v_readfirstlane_b32 s41, v21")
            a("s_mul_i32 s40, s14, 2176")
            a("s_add_u32 s80, s10, s40")
            a("s_addc_u32 s81, s11, 0")
            a("s_and_b32 s81, s81, 0xffff")
            a("s_mov_b32 s83, 0x20000")
            a("s_cmp_eq_u32 s41, 0")
            a("s_cselect_b32 s38, s38, 0")
            a("s_cmp_lg_u32 s38, 0")
            a("s_cselect_b32 s82, 2176, 0")
            a(f"v_lshlrev_b32 v{vT0}, 4, v1")
            for i in range(4):
                a(f"v_mov_b32 v{CSW+i}, 0")
            for i in range(3):
                a(f"buffer_store_dwordx4 {vr(CSW)}, v{vT0}, s[80:83], 0 offen offset:{i*1024} sc1")
                issued.append(None)
        issue_upto(c + 3)
        if c == 4:
            a("v_mov_b32 v21, 1")
            a("s_mov_b64 exec, 1")
            a("buffer_atomic_add v21, v15, s[36:39], 0 offen offset:64")
            a("s_mov_b64 exec, -1")
            issued.append(None)
        if c == 5:
            a(f"v_lshrrev_b32 v{vT0}, 2, v1")
            a(f"v_mul_u32_u24 v{vT0}, 2752, v{vT0}")
            a(f"v_and_b32 v{vT1}, 3, v1")
            a(f"v_lshl_add_u32 v{vT0}, v{vT1}, 4, v{vT0}")
            a(f"s_mul_i32 s40, s12, {64*2752}")
            a("s_lshl_b32 s41, s2, 6")
            a("s_add_u32 s40, s40, s41")
            for i in range(4):
                a(f"buffer_load_dwordx4 {vr(CSW + i*4)}, v{vT0}, s[92:95], s40 offen")
                a(f"s_add_u32 s40, s40, {16*2752}")
                issued.append(100)
            a(f"v_lshlrev_b32 v{vT0}, 4, v1")
            a("s_sub_u32 s41, s12, 1")
            a("s_mul_i32 s40, s41, 3072")
            a("s_lshl_b32 s42, s17, 14")
            a("s_add_u32 s40, s40, s42")
            prefetch(a, 84, 40, 3, vT0, 128, 1)
            a("s_mul_i32 s40, s41, 7168")
            a(f"s_mul_i32 s42, s17, {43*1024}")
            a("s_add_u32 s40, s40, s42")
            prefetch(a, 88, 40, 7, vT0, 128, 1)
            issued.extend([None] * 10)
        if c in (2, 5):
            stamp(a, "k1", 2 + (c == 5))
        compute(2 * c, True)
        compute(2 * c + 1, c < 7)
    a.flush_hazards()
    stamp(a, "k1", 4)
    SR = 56; SL = 72
    ST_OFF = SCR + 24576
    a(f"v_and_b32 v{vT0}, 3, v2")
    a(f"v_cmp_eq_u32 vcc, 1, v{vT0}")
    a(f"v_cndmask_b32 v{S2}, v{S2}, v{S2+1}, vcc")
    a(f"v_cmp_eq_u32 vcc, 2, v{vT0}")
    a(f"v_cndmask_b32 v{S2}, v{S2}, v{S2+2}, vcc")
    a(f"v_cmp_eq_u32 vcc, 3, v{vT0}")
    a(f"v_cndmask_b32 v{S2}, v{S2}, v{S2+3}, vcc")
    a("s_mov_b32 s42, 0x3b000000")
    a("s_mov_b32 s43, 0x3727c5ac")
    a(f"v_mul_f32 v{S1}, s42, v{S1}")
    a(f"v_mul_f32 v{S1+1}, s42, v{S2}")
    a(f"v_fma_f32 v{S1+1}, -v{S1}, v{S1}, v{S1+1}")
    a(f"v_max_f32 v{S1+1}, 0, v{S1+1}")
    a(f"v_add_f32 v{S1+1}, s43, v{S1+1}")
    a(f"v_rsq_f32 v{S1+1}, v{S1+1}")
    a(f"s_lshl_b32 s41, s12, 7")
    a(f"s_add_u32 s41, s41, {ST_OFF}")
    a(f"v_lshlrev_b32 v{vT1}, 3, v2")
    a(f"v_add_u32 v{vT1}, s41, v{vT1}")
    a("s_mov_b32 exec_lo, 0x00f0000f")
    a("s_mov_b32 exec_hi, 0xf0000f00")
    a(f"ds_write_b64 v{vT1}, {vr(S1, 2)}")
    a("s_mov_b64 exec, -1")
    a(f"s_mul_i32 s40, s16, 768")
    a(f"s_lshl_b32 s41, s15, 2")
    a(f"s_add_u32 s41, s41, s40")
    a(f"s_add_u32 s41, s41, {CS_OFF}")
    a(f"v_lshlrev_b32 v{vT0}, 4, v2")
    a(f"v_add_u32 v{vT1}, s41, v{vT0}")
    for seg in range(3):
        a(f"ds_write_b32 v{vT1}, v{CSA + seg*4} offset:{seg*256}")
    a("s_cmp_ge_u32 s2, 43")
    a.branch("s_cbranch_scc1 K1_NOCS")
    for p in range(4):
        a(f"v_mov_b32 v{116+p}, 0")
        a(f"v_cmp_eq_u32 vcc, {2*p}, v2")
        a(f"v_mov_b32 v124, 0x3f80")
        a(f"v_cndmask_b32 v{116+p}, v{116+p}, v124, vcc")
        a(f"v_cmp_eq_u32 vcc, {2*p+1}, v2")
        a(f"v_mov_b32 v124, 0x3f800000")
        a(f"v_cndmask_b32 v{116+p}, v{116+p}, v124, vcc")
    wait_for(100)
    a(f"v_mfma_f32_16x16x32_bf16 v[120:123], v[116:119], {vr(CSW)}, 0")
    for i in range(1, 4):
        a(f"v_mfma_f32_16x16x32_bf16 v[120:123], v[116:119], {vr(CSW + i*4)}, v[120:123]")
    for r in range(4):
        a(f"v_add_f32_dpp v{120+r}, v{120+r}, v{120+r} row_ror:4 row_mask:0xf bank_mask:0xf")
    for r in range(4):
        a(f"v_add_f32_dpp v{120+r}, v{120+r}, v{120+r} row_ror:8 row_mask:0xf bank_mask:0xf")
    a(f"v_and_b32 v124, 3, v2")
    a(f"v_lshlrev_b32 v124, 5, v124")
    a(f"v_and_b32 v125, 1, v3")
    a(f"v_lshl_add_u32 v124, v125, 4, v124")
    a(f"v_lshrrev_b32 v125, 1, v3")
    a(f"v_lshl_add_u32 v124, v125, 10, v124")
    a("s_lshl_b32 s42, s12, 7")
    a(f"s_add_u32 s42, s42, {CW_OFF}")
    a("v_add_u32 v124, s42, v124")
    a("ds_write_b128 v124, v[120:123]")
    a("K1_NOCS:")
    a("s_cmp_lg_u32 s12, 0")
    a.branch("s_cbranch_scc1 K1_NOPOLL0")
    a("s_mov_b64 exec, 1")
    a(f"v_mov_b32 v4, 0")
    a(f"buffer_atomic_add v4, v15, s[32:35], 0 offen offset:64 sc0")
    a("s_mov_b64 exec, -1")
    a("K1_NOPOLL0:")
    a("s_waitcnt lgkmcnt(0)")
    a("s_barrier")
    a("s_cmp_ge_u32 s2, 43")
    a.branch("s_cbranch_scc1 K1_NOCS2")
    a("s_cmp_lg_u32 s12, 1")
    a.branch("s_cbranch_scc1 K1_NOCS2")
    a("s_mov_b32 exec_hi, 0")
    a("v_lshlrev_b32 v124, 2, v1")
    a(f"v_add_u32 v125, {CW_OFF}, v124")
    for w in range(8):
        a(f"ds_read_b32 v{112+w}, v125 offset:{w*128}")
    a("s_lshl_b32 s42, s2, 7")
    a(f"s_add_u32 s42, s42, {CS1}")
    a("s_waitcnt lgkmcnt(0)")
    for w in range(1, 8):
        a(f"v_add_f32 v112, v112, v{112+w}")
    a("buffer_store_dword v112, v124, s[28:31], s42 offen")
    a("s_mov_b64 exec, -1")
    a("K1_NOCS2:")
    CK = 100
    a(f"s_add_u32 s41, s40, {CS_OFF}")
    a(f"v_add_u32 v{vT1}, s41, v{vT0}")
    a(f"ds_read_b128 {vr(CK)}, v{vT1} offset:256")
    a(f"ds_read_b128 {vr(CK+4)}, v{vT1} offset:512")
    a(f"v_lshlrev_b32 v{vT2}, 6, v3")
    a(f"v_add_u32 v{vT2}, s41, v{vT2}")
    for r in range(4):
        a(f"ds_read_b128 {vr(CK+8+r*4)}, v{vT2} offset:{r*16}")
    a(f"s_lshl_b32 s41, s15, 8")
    a(f"s_add_u32 s41, s41, {ST_OFF}")
    a(f"v_lshlrev_b32 v{vT1}, 5, v3")
    a(f"v_add_u32 v{vT1}, s41, v{vT1}")
    a(f"v_lshlrev_b32 v{vT2}, 3, v2")
    a(f"v_add_u32 v{vT2}, s41, v{vT2}")
    for rt in range(2):
        a(f"ds_read_b128 {vr(SR + rt*8)}, v{vT1} offset:{rt*128}")
        a(f"ds_read_b128 {vr(SR + rt*8 + 4)}, v{vT1} offset:{rt*128 + 16}")
        a(f"ds_read_b64 {vr(SL + rt*2, 2)}, v{vT2} offset:{rt*128}")
    a("s_waitcnt lgkmcnt(0)")
    for b in [CK, CK + 4, CK + 8, CK + 12, CK + 16, CK + 20]:
        a(f"v_add_f32 v{b}, v{b}, v{b+1}")
        a(f"v_add_f32 v{b+2}, v{b+2}, v{b+3}")
        a(f"v_add_f32 v{b}, v{b}, v{b+2}")
    a(f"s_mov_b32 s42, {LOG2E:#x}")
    a("s_mov_b32 s43, 0x358637bd")

    def phi(x, t):
        a(f"v_mul_f32 v{t}, s42, v{x}")
        a(f"v_exp_f32 v{t}, v{t}")
        a(f"v_cmp_lt_f32 vcc, 0, v{x}")
        a(f"v_add_f32 v{x}, 1.0, v{x}")
        a(f"v_cndmask_b32 v{x}, v{t}, v{x}, vcc")
        a(f"v_add_f32 v{x}, s43, v{x}")

    T = 124
    for rt in range(2):
        for r in range(4):
            x = ACC + 8 + rt * 4 + r
            a(f"v_fma_f32 v{x}, -v{SR + rt*8 + 2*r}, v{CK}, v{x}")
            a(f"v_mul_f32 v{x}, v{SR + rt*8 + 2*r + 1}, v{x}")
            phi(x, T + 2 + (r & 1))
            x = ACC + 16 + rt * 4 + r
            a(f"v_fma_f32 v{x}, -v{SR + rt*8 + 2*r}, v{CK+4}, v{x}")
            a(f"v_mul_f32 v{x}, v{SR + rt*8 + 2*r + 1}, v{x}")
    PQP, PK, VV = 88, 92, 96
    for rt in range(2):
        for h in range(2):
            a(f"v_cvt_pk_bf16_f32 v{PK + rt*2 + h}, v{ACC + 8 + rt*4 + 2*h}, v{ACC + 8 + rt*4 + 2*h + 1}")
            a(f"v_cvt_pk_bf16_f32 v{VV + rt*2 + h}, v{ACC + 16 + rt*4 + 2*h}, v{ACC + 16 + rt*4 + 2*h + 1}")
    KVR, ZR = 40, 44
    a(f"v_mfma_f32_16x16x32_bf16 {vr(KVR)}, {vr(PK)}, {vr(VV)}, 0")
    a(f"v_mfma_f32_16x16x32_bf16 {vr(ZR)}, {vr(PK)}, {vr(vONE)}, 0")
    for rt in range(2):
        for r in range(4):
            x = ACC + rt * 4 + r
            a(f"v_fma_f32 v{x}, -v{SL + rt*2}, v{CK + 8 + r*4}, v{x}")
            a(f"v_mul_f32 v{x}, v{SL + rt*2 + 1}, v{x}")
            phi(x, T + (r & 1))
    for rt in range(2):
        for h in range(2):
            a(f"v_cvt_pk_bf16_f32 v{PQP + rt*2 + h}, v{ACC + rt*4 + 2*h}, v{ACC + rt*4 + 2*h + 1}")
    a(f"s_lshl_b32 s40, s15, 11")
    a(f"s_lshl_b32 s41, s16, 3")
    a(f"s_add_u32 s41, s41, s40")
    a(f"s_add_u32 s41, s41, {PQX_OFF}")
    a(f"v_lshlrev_b32 v{vT0}, 4, v1")
    a(f"v_add_u32 v{vT1}, s41, v{vT0}")
    a(f"ds_write_b64 v{vT1}, {vr(PQP, 2)}")
    a(f"ds_write_b64 v{vT1}, {vr(PQP+2, 2)} offset:1024")
    a(f"s_lshl_b32 s41, s16, 2")
    a(f"s_add_u32 s41, s41, s15")
    a(f"s_lshl_b32 s42, s41, 10")
    a(f"s_add_u32 s42, s42, {KVX_OFF}")
    a(f"v_add_u32 v{vT1}, s42, v{vT0}")
    a(f"ds_write_b128 v{vT1}, {vr(KVR)}")
    a(f"s_lshl_b32 s42, s41, 6")
    a(f"s_add_u32 s42, s42, {ZX_OFF}")
    a(f"v_lshlrev_b32 v{vT2}, 4, v3")
    a(f"v_add_u32 v{vT2}, s42, v{vT2}")
    a(f"ds_write_b128 v{vT2}, {vr(ZR)}")
    a("s_cmp_lg_u32 s12, 0")
    a.branch("s_cbranch_scc1 K1_NOPOLL")
    a("s_mov_b64 exec, 1")
    a("s_mov_b32 s43, 0")
    a("K1_POLL:")
    a("s_waitcnt vmcnt(0)")
    a("v_readfirstlane_b32 s42, v4")
    a("s_add_u32 s43, s43, 1")
    a("s_cmp_lg_u32 s42, 0")
    a.branch("s_cbranch_scc1 K1_POLLX")
    a("s_cmp_gt_u32 s43, 0x100000")
    a.branch("s_cbranch_scc1 K1_POLLX")
    a(f"v_mov_b32 v4, 0")
    a(f"buffer_atomic_add v4, v15, s[32:35], 0 offen offset:64 sc0")
    a.branch("s_branch K1_POLL")
    a("K1_POLLX:")
    a("s_mov_b64 exec, -1")
    a("K1_NOPOLL:")
    a("s_waitcnt lgkmcnt(0)")
    a("s_barrier")
    stamp(a, "k1", 5)
    a(f"s_lshl_b32 s41, s16, 10")
    a(f"s_add_u32 s41, s41, s40")
    a(f"s_add_u32 s41, s41, {PQX_OFF}")
    a(f"v_add_u32 v{vT1}, s41, v{vT0}")
    a(f"ds_read_b128 {vr(56)}, v{vT1}")
    a(f"v_lshrrev_b32 v{vT1}, 8, v0")
    a(f"v_and_b32 v{vT2}, 255, v0")
    a(f"v_lshlrev_b32 v4, 2, v{vT2}")
    a(f"v_lshl_add_u32 v4, v{vT1}, 12, v4")
    a(f"v_add_u32 v4, {KVX_OFF}, v4")
    for wm in range(4):
        a(f"ds_read_b32 v{60+wm}, v4 offset:{wm*1024}")
    a(f"s_mul_i32 s41, s14, 2176")
    a(f"v_mul_u32_u24 v{vT1}, 1088, v{vT1}")
    a(f"v_lshl_add_u32 v{vT1}, v{vT2}, 2, v{vT1}")
    a(f"s_lshl_b32 s42, s13, 3")
    a(f"s_add_u32 s42, s42, s12")
    a(f"s_lshl_b32 s42, s42, 4")
    a(f"s_add_u32 s42, s42, s14")
    a(f"s_lshl_b32 s42, s42, 10")
    a(f"s_add_u32 s42, s42, {PQ}")
    a("s_waitcnt lgkmcnt(4)")
    a(f"buffer_store_dwordx4 {vr(56)}, v{vT0}, s[28:31], s42 offen")
    a("s_waitcnt lgkmcnt(0)")
    a("v_add_f32 v60, v60, v61")
    a("v_add_f32 v62, v62, v63")
    a("v_add_f32 v60, v60, v62")
    a(f"buffer_atomic_add_f32 v60, v{vT1}, s[28:31], s41 offen")
    a("s_cmp_lg_u32 s12, 0")
    a.branch("s_cbranch_scc1 K1_END")
    a("s_mov_b32 exec_hi, 0")
    a(f"v_lshlrev_b32 v4, 2, v2")
    a(f"v_lshl_add_u32 v4, v3, 8, v4")
    a(f"v_add_u32 v4, {ZX_OFF}, v4")
    for wm in range(4):
        a(f"ds_read_b32 v{64+wm}, v4 offset:{wm*64}")
    a(f"v_mul_u32_u24 v{vT1}, 1088, v3")
    a(f"v_lshl_add_u32 v{vT1}, v2, 2, v{vT1}")
    a("s_waitcnt lgkmcnt(0)")
    a("v_add_f32 v64, v64, v65")
    a("v_add_f32 v66, v66, v67")
    a("v_add_f32 v64, v64, v66")
    a(f"buffer_atomic_add_f32 v64, v{vT1}, s[28:31], s41 offen offset:1024")
    stamp(a, "k1", 6)
    if "k1" in STAMPS:
        a("s_waitcnt vmcnt(0)")
    stamp(a, "k1", 7)
    stamp_flush(a, "k1", 0, 8)
    a("K1_END:")
    a("s_endpgm")
    return a.text(), 152


def gen_k2():
    a = Asm()
    KVL = 65536
    RED = 0
    a("s_cmp_ge_u32 s2, 256")
    a("s_cbranch_scc1 K2_END")
    stamp(a, "k2", 0)
    a("s_load_dwordx2 s[4:5], s[0:1], 0")
    a("s_load_dwordx2 s[6:7], s[0:1], 16")
    a("s_load_dwordx2 s[8:9], s[0:1], 48")
    a("s_load_dwordx2 s[10:11], s[0:1], 72")
    preamble(a)
    a("s_and_b32 s40, s2, 7")
    a("s_lshr_b32 s17, s2, 3")
    a("s_lshl_b32 s13, s40, 2")
    a("s_and_b32 s42, s17, 3")
    a("s_add_u32 s13, s13, s42")
    a("s_lshr_b32 s14, s17, 2")
    a("s_and_b32 s18, s12, 3")
    a("s_lshr_b32 s19, s12, 2")
    a("s_lshl_b32 s15, s13, 2")
    a("s_add_u32 s15, s15, s18")
    a("s_waitcnt lgkmcnt(0)")
    srd(a, 20, 4, 5, 2048 * 1024)
    srd(a, 24, 6, 7, 512 * 1024)
    srd(a, 28, 10, 11, WS_USED)
    vL16, vG16, vB, vT0, vT1, vT2 = 5, 6, 7, 8, 9, 10
    a(f"v_lshlrev_b32 v{vL16}, 4, v1")
    srd(a, 32, 8, 9, 1376 * 1024)
    vBR = 12
    KVF = 16
    PQF = 48
    XR = 80
    ACC = 88
    a(f"v_lshlrev_b32 v{vG16}, 4, v3")
    a(f"s_mul_i32 s40, s12, {4*KV_HEAD}")
    for i in range(4):
        if i == 2:
            a(f"s_add_u32 s40, s40, {2*KV_HEAD}")
        a(f"buffer_load_dwordx4 {vr(KVF + i*4)}, v{vL16}, s[28:31], s40 offen offset:{KVACC + (i%2)*KV_HEAD}")
        a(f"buffer_load_dwordx4 {vr(KVF + 16 + i*4)}, v{vG16}, s[28:31], s40 offen offset:{KVACC + (i%2)*KV_HEAD + 1024}")
    a(f"s_lshl_b32 s40, s15, 14")
    a(f"s_lshl_b32 s41, s19, 10")
    a(f"s_add_u32 s40, s40, s41")
    a(f"s_add_u32 s40, s40, {PQ}")
    b_dma_voff(a, vB, vT0, vT1, 1024)
    a("s_lshr_b32 s41, s12, 1")
    a("s_and_b32 s42, s12, 1")
    a("s_lshl_b32 s43, s14, 7")
    a("s_lshl_b32 s44, s41, 14")
    a("s_add_u32 s44, s44, s43")
    a("s_lshl_b32 s45, s42, 6")
    a("s_add_u32 s44, s44, s45")
    a("s_lshl_b32 s45, s42, 15")
    a("s_lshl_b32 s46, s41, 10")
    a("s_add_u32 s45, s45, s46")
    for i in range(8):
        a(f"buffer_load_dwordx4 {vr(PQF + i*4)}, v{vL16}, s[28:31], s40 offen offset:{(i%2)*2048}")
        if i % 2:
            a("s_add_u32 s40, s40, 4096")
        a(f"s_add_u32 m0, s45, {i*4096}")
        a(f"s_add_u32 s46, s44, {i*65536}")
        a(f"buffer_load_dwordx4 v{vB}, s[24:27], s46 offen lds")
    a(f"v_and_b32 v{vT0}, 1, v3")
    a(f"v_lshlrev_b32 v{vT0}, 3, v{vT0}")
    a(f"v_lshl_add_u32 v{vT1}, v2, 10, v{vG16}")
    a(f"v_add_u32 v{vT2}, v{vT1}, v{vT0}")
    a(f"v_xor_b32 v{vT1}, 8, v{vT2}")
    a("s_lshl_b32 s40, s15, 14")
    a("s_add_u32 s40, s40, s43")
    a("s_lshl_b32 s41, s19, 6")
    a("s_add_u32 s40, s40, s41")
    a(f"buffer_load_dwordx2 {vr(XR, 2)}, v{vT2}, s[20:23], s40 offen")
    a(f"buffer_load_dwordx2 {vr(XR + 2, 2)}, v{vT1}, s[20:23], s40 offen")
    b_read_bases(a, vBR, vT0, vT1, vT2, 'nat')
    a("s_lshl_b32 s41, s19, 11")
    for i in range(4):
        a(f"v_add_u32 v{vBR+i}, s41, v{vBR+i}")
    for i in range(16):
        a(f"v_mov_b32 v{ACC+i}, 0")
    stamp(a, "k2", 1)
    a("s_waitcnt vmcnt(18)")
    a(f"s_lshl_b32 s40, s12, 12")
    a(f"s_add_u32 s40, s40, {KVL}")
    a(f"v_add_u32 v{vT0}, s40, v{vL16}")
    for i in range(4):
        k = KVF + i * 4; z = KVF + 16 + i * 4
        a(f"v_cvt_pk_bf16_f32 v{k}, v{k}, v{k+1}")
        a(f"v_cvt_pk_bf16_f32 v{k+1}, v{k+2}, v{k+3}")
        a(f"v_cvt_pk_bf16_f32 v{k+2}, v{z}, v{z+1}")
        a(f"v_cvt_pk_bf16_f32 v{k+3}, v{z+2}, v{z+3}")
        a(f"ds_write_b128 v{vT0}, {vr(k)} offset:{i*1024}")
    a("s_waitcnt vmcnt(10) lgkmcnt(0)")
    a("s_barrier")
    stamp(a, "k2", 2)
    a(f"s_lshl_b32 s41, s19, 11")
    a(f"s_add_u32 s41, s41, {KVL}")
    a(f"v_add_u32 v{vT0}, s41, v{vL16}")
    a(f"v_and_b32 v{vT1}, 1, v1")
    a(f"v_cmp_eq_u32 s[46:47], 0, v{vT1}")
    a("s_mov_b32 s48, 0x358637bd")
    KH = 16; ZP = 32; NUM = 104; DEN = 120; OF = 40; WF = 128

    def rd_kv(s):
        b = s & 1
        a(f"ds_read_b128 {vr(KH + b*8)}, v{vT0} offset:{s*4096}")
        a(f"ds_read_b128 {vr(KH + b*8 + 4)}, v{vT0} offset:{s*4096 + 1024}")

    def rd_wo(s):
        b = s & 1
        for u in range(2):
            for tau in range(2):
                for rd in range(2):
                    a(f"ds_read_b64_tr_b16 {vr(WF + b*16 + (u*2+tau)*4 + rd*2, 2)}, v{vBR + rd*2 + tau} offset:{u*32768 + s*4096}")

    def nd(s):
        b = s & 1
        k0 = KH + b * 8; k1 = k0 + 4; z = ZP + b * 4
        a(f"v_cndmask_b32 v{z}, 0, v{k0+2}, s[46:47]")
        a(f"v_cndmask_b32 v{z+1}, 0, v{k0+3}, s[46:47]")
        a(f"v_cndmask_b32 v{z+2}, v{k1+2}, 0, s[46:47]")
        a(f"v_cndmask_b32 v{z+3}, v{k1+3}, 0, s[46:47]")
        p = PQF + s * 4
        a(f"v_mfma_f32_16x16x16_bf16 {vr(NUM + b*8)}, {vr(k0, 2)}, {vr(p, 2)}, 0")
        a(f"v_mfma_f32_16x16x16_bf16 {vr(NUM + b*8 + 4)}, {vr(k1, 2)}, {vr(p+2, 2)}, 0")
        a(f"v_mfma_f32_16x16x32_bf16 {vr(DEN + b*4)}, {vr(z)}, {vr(p)}, 0")

    def omake(s):
        b = s & 1
        d = DEN + b * 4; n = NUM + b * 8; o = OF + b * 4
        a(f"v_add_f32 v{d}, s48, v{d}")
        a(f"v_add_f32 v{d+1}, s48, v{d+1}")
        a(f"v_rcp_f32 v{d}, v{d}")
        a(f"v_rcp_f32 v{d+1}, v{d+1}")
        for h in range(2):
            for r in range(4):
                a(f"v_mul_f32 v{n + h*4 + r}, v{n + h*4 + r}, v{d+h}")
        for h in range(2):
            a(f"v_cvt_pk_bf16_f32 v{o + h*2}, v{n + h*4}, v{n + h*4 + 1}")
            a(f"v_cvt_pk_bf16_f32 v{o + h*2 + 1}, v{n + h*4 + 2}, v{n + h*4 + 3}")

    def mm(s):
        b = s & 1
        for t in range(4):
            a(f"v_mfma_f32_16x16x32_bf16 {vr(ACC + t*4)}, {vr(WF + b*16 + t*4)}, {vr(OF + b*4)}, {vr(ACC + t*4)}")

    rd_kv(0); rd_wo(0)
    a("s_waitcnt lgkmcnt(8)")
    nd(0)
    for s in range(8):
        if s == 3:
            a("s_waitcnt vmcnt(2)")
            a("s_barrier")
            a(f"s_mul_i32 s40, s17, {43*1024}")
            a("s_mul_i32 s41, s12, 6144")
            a("s_add_u32 s40, s40, s41")
            prefetch(a, 32, 40, 6, vL16, 84, 1)
        if s + 1 < 8:
            rd_kv(s + 1)
            a("s_waitcnt lgkmcnt(0)")
            nd(s + 1)
            rd_wo(s + 1)
        else:
            a("s_waitcnt lgkmcnt(0)")
        omake(s)
        mm(s)
    stamp(a, "k2", 3)
    a("s_barrier")
    a("s_lshl_b32 s40, s18, 12")
    a("s_xor_b32 s41, s19, 1")
    a("s_lshl_b32 s41, s41, 11")
    a("s_add_u32 s41, s41, s40")
    a(f"v_add_u32 v{vT0}, s41, v{vL16}")
    a("s_cmp_eq_u32 s19, 0")
    a.branch("s_cbranch_scc0 K2_R1")
    a(f"ds_write_b128 v{vT0}, {vr(ACC+8)}")
    a(f"ds_write_b128 v{vT0}, {vr(ACC+12)} offset:1024")
    a.branch("s_branch K2_R2")
    a("K2_R1:")
    a(f"ds_write_b128 v{vT0}, {vr(ACC)}")
    a(f"ds_write_b128 v{vT0}, {vr(ACC+4)} offset:1024")
    for i in range(8):
        a(f"v_mov_b32 v{ACC+i}, v{ACC+8+i}")
    a("K2_R2:")
    a("s_waitcnt lgkmcnt(0)")
    a("s_barrier")
    a("s_lshl_b32 s41, s19, 11")
    a("s_add_u32 s41, s41, s40")
    a(f"v_add_u32 v{vT0}, s41, v{vL16}")
    a(f"ds_read_b128 {vr(16)}, v{vT0}")
    a(f"ds_read_b128 {vr(20)}, v{vT0} offset:1024")
    a("s_waitcnt vmcnt(6) lgkmcnt(0)")
    HO = 24
    for tau in range(2):
        for h in range(2):
            xr = XR + tau * 2 + h
            a(f"v_lshlrev_b32 v{vT1}, 16, v{xr}")
            a(f"v_and_b32 v{vT2}, 0xffff0000, v{xr}")
            a(f"v_add_f32 v{vT1}, v{vT1}, v{ACC + tau*4 + 2*h}")
            a(f"v_add_f32 v{vT2}, v{vT2}, v{ACC + tau*4 + 2*h + 1}")
            a(f"v_add_f32 v{vT1}, v{vT1}, v{16 + tau*4 + 2*h}")
            a(f"v_add_f32 v{vT2}, v{vT2}, v{16 + tau*4 + 2*h + 1}")
            a(f"v_cvt_pk_bf16_f32 v{HO + tau*2 + h}, v{vT1}, v{vT2}")
    a("s_lshl_b32 s40, s15, 4")
    a("s_lshl_b32 s41, s14, 1")
    a("s_add_u32 s40, s40, s41")
    a("s_add_u32 s40, s40, s19")
    a("s_lshl_b32 s40, s40, 10")
    a(f"s_add_u32 s40, s40, {HH}")
    a(f"buffer_store_dwordx4 {vr(HO)}, v{vL16}, s[28:31], s40 offen")
    a("v_mov_b32 v28, 0\nv_mov_b32 v29, 0\nv_mov_b32 v30, 1.0")
    for i in range(4):
        a(f"v_lshlrev_b32 v{vT1}, 16, v{HO+i}")
        a(f"v_and_b32 v{vT2}, 0xffff0000, v{HO+i}")
        a(f"v_add_f32 v28, v28, v{vT1}")
        a(f"v_fma_f32 v29, v{vT1}, v{vT1}, v29")
        a(f"v_add_f32 v28, v28, v{vT2}")
        a(f"v_fma_f32 v29, v{vT2}, v{vT2}, v29")
    a("v_mfma_f32_16x16x4_f32 v[32:35], v30, v28, 0")
    a("v_mfma_f32_16x16x4_f32 v[36:39], v30, v29, 0")
    a(f"s_sub_u32 s40, s40, {HH}")
    a("s_lshr_b32 s40, s40, 3")
    a(f"s_add_u32 s40, s40, {STAT2}")
    a(f"v_lshlrev_b32 v{vT1}, 3, v2")
    a("v_mov_b32 v33, v36")
    a("s_mov_b64 exec, 0xffff")
    a(f"buffer_store_dwordx2 v[32:33], v{vT1}, s[28:31], s40 offen")
    a("s_mov_b64 exec, -1")
    stamp(a, "k2", 4)
    if "k2" in STAMPS:
        a("s_waitcnt vmcnt(0)")
    stamp(a, "k2", 5)
    stamp_flush(a, "k2", 1, 6)
    a("K2_END:")
    a("s_endpgm")
    return a.text(), 160


def gen_k3():
    a = Asm()
    a("s_cmp_ge_u32 s2, 256")
    a("s_cbranch_scc1 K3_END")
    stamp(a, "k3", 0)
    a("s_load_dwordx4 s[4:7], s[0:1], 32")
    a("s_load_dwordx2 s[10:11], s[0:1], 72")
    preamble(a)
    a("s_and_b32 s40, s2, 7")
    a("s_lshr_b32 s41, s2, 3")
    a("s_lshl_b32 s13, s40, 1")
    a("s_and_b32 s42, s41, 1")
    a("s_add_u32 s13, s13, s42")
    a("s_lshr_b32 s14, s41, 1")
    a("s_mul_i32 s14, s14, 349528")
    a("s_lshr_b32 s14, s14, 17")
    a("s_lshl_b32 s15, s13, 3")
    a("s_add_u32 s15, s15, s12")
    a("s_waitcnt lgkmcnt(0)")
    srd(a, 20, 4, 5, 512 * 2752)
    srd(a, 24, 6, 7, 2752)
    srd(a, 28, 10, 11, WS_USED)
    vL16, vB, vT0, vT1, vT2 = 5, 7, 8, 9, 10
    vBR = 12; vONE = 20; vONEF = 21; vSUM = 22; vSQ = 23
    BI = 24
    CR = 36
    HF = 60
    ACC = 124
    WF = 148
    a(f"v_lshlrev_b32 v{vL16}, 4, v1")
    b_dma_voff(a, vB, vT0, vT1, 2752)
    a("s_lshl_b32 s43, s14, 6")
    a("s_lshl_b32 s46, s15, 14")
    a(f"s_add_u32 s46, s46, {HH}")
    for j in range(3):
        a(f"s_add_u32 s40, s12, {8*j}")
        a(f"s_mul_i32 s41, s40, 43691")
        a(f"s_lshr_b32 s41, s41, 17")
        a(f"s_mul_i32 s42, s41, 3")
        a(f"s_sub_u32 s42, s40, s42")
        a(f"s_mul_i32 s{54+2*j}, s41, {16*2752}")
        a(f"s_lshl_b32 s44, s42, 6")
        a(f"s_add_u32 s{54+2*j}, s{54+2*j}, s44")
        a(f"s_add_u32 s{54+2*j}, s{54+2*j}, s43")
        a(f"s_lshl_b32 s{55+2*j}, s42, 15")
        a(f"s_lshl_b32 s44, s41, 10")
        a(f"s_add_u32 s{55+2*j}, s{55+2*j}, s44")

    def mkB(grp, j):
        def f():
            a(f"s_add_u32 m0, s{55+2*j}, {grp*8192}")
            a(f"s_add_u32 s49, s{54+2*j}, {grp*128*2752}")
            a(f"buffer_load_dwordx4 v{vB}, s[20:23], s49 offen lds")
        return f

    def mkA(kk):
        def f():
            if kk % 4 == 0:
                a(f"s_add_u32 s47, s46, {kk*1024}")
            a(f"buffer_load_dwordx4 {vr(HF + kk*4)}, v{vL16}, s[28:31], s47 offen offset:{(kk%4)*1024}")
        return f

    loads = []
    for kk in range(16):
        if kk % 4 < 3:
            loads.append((kk, mkB(kk // 4, kk % 4)))
        loads.append((kk, mkA(kk)))

    def setup(issued):
        b_read_bases(a, vBR, vT0, vT1, vT2, 'perm')
        for i in range(4):
            a(f"v_add_u32 v{vBR+4+i}, 0x10000, v{vBR+i}")
        a(f"v_mov_b32 v{vONE}, {ONES_BF16:#x}")
        a(f"v_mov_b32 v{vONEF}, 1.0")
        a(f"v_mov_b32 v{vSUM}, 0\nv_mov_b32 v{vSQ}, 0")
        for i in range(24):
            a(f"v_mov_b32 v{ACC+i}, 0")
        stamp(a, "k3", 1)

    SP = 196

    def rd_w(dsq, kk, t):
        b = kk & 1
        u = t >> 1; tau = t & 1
        for rd in range(2):
            base = vBR + rd * 2 + tau + (4 if u == 2 else 0)
            off = (u & 1) * 32768 + kk * 2048 if u < 2 else kk * 2048
            dsq.issue((kk, t), f"ds_read_b64_tr_b16 {vr(WF + b*24 + t*4 + rd*2, 2)}, v{base} offset:{off}")

    def mm(kk, t):
        b = kk & 1
        a(f"v_mfma_f32_16x16x32_bf16 {vr(ACC + t*4)}, {vr(WF + b*24 + t*4)}, {vr(HF + kk*4)}, {vr(ACC + t*4)}")

    def mkBias():
        a(f"v_and_b32 v{vT0}, 1, v3")
        a(f"v_lshlrev_b32 v{vT0}, 3, v{vT0}")
        a(f"v_lshl_add_u32 v{vT2}, v3, 4, v{vT0}")
        a(f"v_xor_b32 v{vT1}, 8, v{vT2}")
        for u in range(3):
            a(f"buffer_load_dwordx2 {vr(BI + u*4, 2)}, v{vT2}, s[24:27], s43 offen offset:{u*64}")
            a(f"buffer_load_dwordx2 {vr(BI + u*4 + 2, 2)}, v{vT1}, s[24:27], s43 offen offset:{u*64}")
        a(f"v_lshlrev_b32 v{vT2}, 1, v{vT2}")
        a(f"v_lshlrev_b32 v{vT1}, 1, v{vT1}")
        a(f"s_lshl_b32 s44, s43, 1")
        a(f"s_add_u32 s44, s44, {CS1}")
        for u in range(3):
            a(f"buffer_load_dwordx4 {vr(CR + u*8)}, v{vT2}, s[28:31], s44 offen offset:{u*128}")
            a(f"buffer_load_dwordx4 {vr(CR + u*8 + 4)}, v{vT1}, s[28:31], s44 offen offset:{u*128}")
        a(f"v_lshlrev_b32 v{vT0}, 3, v2")
        a(f"v_lshl_add_u32 v{vT0}, v3, 9, v{vT0}")
        a(f"s_lshl_b32 s44, s15, 11")
        a(f"s_add_u32 s44, s44, {STAT2}")
        for i in range(4):
            a(f"buffer_load_dwordx2 {vr(SP + i*2, 2)}, v{vT0}, s[28:31], s44 offen offset:{i*128}")

    def onc(c, issued):
        if c == 4:
            mkBias(); issued.extend([None] * 16)
        if c in (2, 5):
            stamp(a, "k3", 2 + (c == 5))

    stream3(a, 16, loads, 6, rd_w, mm, CH=2, LA=K3_LA, setup=lambda: setup(None), on_chunk=onc)
    stamp(a, "k3", 4)
    ST = 148
    a("s_waitcnt vmcnt(0)")
    a(f"v_add_f32 v{SP}, v{SP}, v{SP+2}")
    a(f"v_add_f32 v{SP+1}, v{SP+1}, v{SP+3}")
    a(f"v_add_f32 v{SP+4}, v{SP+4}, v{SP+6}")
    a(f"v_add_f32 v{SP+5}, v{SP+5}, v{SP+7}")
    a(f"v_add_f32 v{SP}, v{SP}, v{SP+4}")
    a(f"v_add_f32 v{SP+1}, v{SP+1}, v{SP+5}")
    a(f"v_mfma_f32_16x16x4_f32 {vr(ST)}, v{vONEF}, v{SP}, 0")
    a(f"v_mfma_f32_16x16x4_f32 {vr(ST+4)}, v{vONEF}, v{SP+1}, 0")
    a("s_mov_b32 s42, 0x3b000000")
    a("s_mov_b32 s43, 0x3727c5ac")
    m = ST; q = ST + 4
    a(f"v_mul_f32 v{m}, s42, v{m}")
    a(f"v_mul_f32 v{q}, s42, v{q}")
    a(f"v_fma_f32 v{q}, -v{m}, v{m}, v{q}")
    a(f"v_max_f32 v{q}, 0, v{q}")
    a(f"v_add_f32 v{q}, s43, v{q}")
    a(f"v_rsq_f32 v{q}, v{q}")
    a(f"s_mov_b32 s42, {LOG2E:#x}\ns_mov_b32 s43, {LOG2E:#x}")
    a("s_mov_b32 s44, 2.0\ns_mov_b32 s45, 2.0")
    a("s_mov_b32 s48, 0x41e6d4ca")
    a("s_mul_i32 s40, s15, 43")
    a("s_add_u32 s40, s40, s14")
    a("s_lshl_b32 s40, s40, 10")
    a(f"s_add_u32 s40, s40, {ACT}")
    T = 156
    AO = 60
    for t in range(6):
        for h in range(2):
            x = ACC + t * 4 + 2 * h
            tb = T + h * 6
            bi = BI + t * 2 + h
            a(f"v_lshlrev_b32 v{tb}, 16, v{bi}")
            a(f"v_and_b32 v{tb+1}, 0xffff0000, v{bi}")
            a(f"v_pk_fma_f32 {vr(x,2)}, {vr(CR + t*4 + 2*h,2)}, {vr(m,2)}, {vr(x,2)} op_sel_hi:[1,0,1] neg_lo:[0,1,0] neg_hi:[0,1,0]")
            a(f"v_pk_fma_f32 {vr(x,2)}, {vr(x,2)}, {vr(q,2)}, {vr(tb,2)} op_sel_hi:[1,0,1]")
            a(f"v_pk_mul_f32 {vr(tb+2,2)}, {vr(x,2)}, s[42:43]")
            a(f"v_min_f32 v{tb+2}, s48, v{tb+2}")
            a(f"v_min_f32 v{tb+3}, s48, v{tb+3}")
        for h in range(2):
            tb = T + h * 6
            a(f"v_exp_f32 v{tb+2}, v{tb+2}")
            a(f"v_exp_f32 v{tb+3}, v{tb+3}")
        for h in range(2):
            tb = T + h * 6
            a(f"v_pk_add_f32 {vr(tb+4,2)}, {vr(tb+2,2)}, s[44:45]")
            a(f"v_pk_mul_f32 {vr(tb+2,2)}, {vr(tb+2,2)}, {vr(tb+4,2)}")
            a(f"v_pk_add_f32 {vr(tb+4,2)}, {vr(tb+2,2)}, s[44:45]")
        for h in range(2):
            tb = T + h * 6
            a(f"v_rcp_f32 v{tb+4}, v{tb+4}")
            a(f"v_rcp_f32 v{tb+5}, v{tb+5}")
        for h in range(2):
            x = ACC + t * 4 + 2 * h
            tb = T + h * 6
            a(f"v_pk_mul_f32 {vr(tb+2,2)}, {vr(tb+2,2)}, {vr(x,2)}")
            a(f"v_pk_mul_f32 {vr(x,2)}, {vr(tb+2,2)}, {vr(tb+4,2)}")
            a(f"v_cvt_pk_bf16_f32 v{AO + t*2 + h}, v{x}, v{x+1}")
        if t & 1:
            u = t >> 1
            a(f"buffer_store_dwordx4 {vr(AO + u*4)}, v{vL16}, s[28:31], s40 offen offset:{u*1024}")
    stamp(a, "k3", 5)
    if "k3" in STAMPS:
        a("s_waitcnt vmcnt(0)")
    stamp(a, "k3", 6)
    stamp_flush(a, "k3", 2, 7)
    a("K3_END:")
    a("s_endpgm")
    return a.text(), 204


def gen_k4():
    a = Asm()
    NS = 12
    NA = 12
    a("s_cmp_ge_u32 s2, 256")
    a("s_cbranch_scc1 K4_END")
    stamp(a, "k4", 0)
    a("s_load_dwordx4 s[4:7], s[0:1], 48")
    a("s_load_dwordx2 s[10:11], s[0:1], 72")
    preamble(a)
    a("s_and_b32 s40, s2, 7")
    a("s_lshr_b32 s41, s2, 3")
    a("s_lshl_b32 s13, s40, 2")
    a("s_and_b32 s42, s41, 3")
    a("s_add_u32 s13, s13, s42")
    a("s_lshr_b32 s14, s41, 2")
    a("s_and_b32 s18, s12, 3")
    a("s_lshr_b32 s19, s12, 2")
    a("s_lshl_b32 s15, s13, 2")
    a("s_add_u32 s15, s15, s18")
    a("s_waitcnt lgkmcnt(0)")
    srd(a, 20, 4, 5, 1376 * 1024)
    srd(a, 24, 6, 7, 2048 * 1024)
    srd(a, 28, 10, 11, WS_USED)
    vL16, vB, vT0, vT1, vT2 = 5, 7, 8, 9, 10
    vBR = 12
    HR = 20
    ACC = 24
    WF = 40
    AF = 72
    a(f"v_lshlrev_b32 v{vL16}, 4, v1")
    b_dma_voff(a, vB, vT0, vT1, 1024)
    a("s_lshr_b32 s41, s12, 1")
    a("s_and_b32 s42, s12, 1")
    a("s_lshl_b32 s43, s41, 14")
    a("s_lshl_b32 s44, s42, 6")
    a("s_add_u32 s43, s43, s44")
    a("s_lshl_b32 s44, s14, 7")
    a("s_add_u32 s43, s43, s44")
    a("s_lshr_b32 s44, s41, 1")
    a("s_lshl_b32 s44, s44, 12")
    a("s_lshl_b32 s45, s42, 11")
    a("s_add_u32 s44, s44, s45")
    a("s_and_b32 s45, s41, 1")
    a("s_lshl_b32 s45, s45, 10")
    a("s_add_u32 s44, s44, s45")
    a("s_mul_i32 s46, s15, 43")
    a("s_add_u32 s46, s46, s19")
    a("s_lshl_b32 s46, s46, 10")
    a(f"s_add_u32 s46, s46, {ACT}")
    nsteps = 22

    def mkB(s):
        def f():
            a(f"s_add_u32 m0, s44, {(s % NS)*8192}")
            a(f"s_add_u32 s45, s43, {s*65536}")
            a(f"buffer_load_dwordx4 v{vB}, s[20:23], s45 offen lds")
        return f

    def mkA(s):
        def f():
            if s % 2 == 0:
                a(f"s_add_u32 s47, s46, {s*2048}")
            a(f"buffer_load_dwordx4 {vr(AF + (s % NA)*4)}, v{vL16}, s[28:31], s47 offen offset:{(s%2)*2048}")
        return f

    loads = []
    for s in range(nsteps):
        loads.append((s, mkB(s))); loads.append((s, mkA(s)))

    def setup(issued):
        b_read_bases(a, vBR, vT0, vT1, vT2, 'perm')
        a("s_lshl_b32 s41, s19, 12")
        for i in range(4):
            a(f"v_add_u32 v{vBR+i}, s41, v{vBR+i}")
            a(f"v_add_u32 v{vBR+4+i}, 0x10000, v{vBR+i}")
        for i in range(16):
            a(f"v_mov_b32 v{ACC+i}, 0")
        stamp(a, "k4", 1)

    def rd_w(dsq, s, t):
        b = s & 1
        u = t >> 1; tau = t & 1
        off = (s % NS) * 8192 + u * 2048
        for rd in range(2):
            base = vBR + rd * 2 + tau + 4 * (off >> 16)
            dsq.issue((s, t), f"ds_read_b64_tr_b16 {vr(WF + b*16 + t*4 + rd*2, 2)}, v{base} offset:{off & 0xffff}")

    def mm(s, t):
        b = s & 1
        if s == nsteps - 1 and t == 0:
            a("s_waitcnt lgkmcnt(0)")
            a("s_cmp_lg_u32 s19, 0")
            a.branch("s_cbranch_scc1 K4_SKIP")
        a(f"v_mfma_f32_16x16x32_bf16 {vr(ACC + t*4)}, {vr(WF + b*16 + t*4)}, {vr(AF + (s % NA)*4)}, {vr(ACC + t*4)}")
        if s == nsteps - 1 and t == 3:
            a("K4_SKIP:")

    def onc(c, issued):
        if c in (3, 7):
            stamp(a, "k4", 2 + (c == 7))
        if c == 8:
            a("s_lshl_b32 s40, s15, 4")
            a("s_lshl_b32 s41, s14, 1")
            a("s_add_u32 s40, s40, s41")
            a("s_add_u32 s40, s40, s19")
            a("s_lshl_b32 s40, s40, 10")
            a(f"s_add_u32 s40, s40, {HH}")

    stream3(a, nsteps, loads, 4, rd_w, mm, CH=2, LA=K4_LA, ring=NS, setup=lambda: setup(None), on_chunk=onc)
    a(f"buffer_load_dwordx4 {vr(HR)}, v{vL16}, s[28:31], s40 offen")
    stamp(a, "k4", 4)
    RED = NS * 8192
    a("s_lshl_b32 s40, s18, 12")
    a(f"s_add_u32 s40, s40, {RED}")
    a("s_xor_b32 s41, s19, 1")
    a("s_lshl_b32 s41, s41, 11")
    a("s_add_u32 s41, s41, s40")
    a(f"v_add_u32 v{vT0}, s41, v{vL16}")
    a("s_cmp_eq_u32 s19, 0")
    a.branch("s_cbranch_scc0 K4_R1")
    a(f"ds_write_b128 v{vT0}, {vr(ACC+8)}")
    a(f"ds_write_b128 v{vT0}, {vr(ACC+12)} offset:1024")
    a.branch("s_branch K4_R2")
    a("K4_R1:")
    a(f"ds_write_b128 v{vT0}, {vr(ACC)}")
    a(f"ds_write_b128 v{vT0}, {vr(ACC+4)} offset:1024")
    for i in range(8):
        a(f"v_mov_b32 v{ACC+i}, v{ACC+8+i}")
    a("K4_R2:")
    a("s_waitcnt lgkmcnt(0)")
    a("s_barrier")
    a("s_lshl_b32 s41, s19, 11")
    a("s_add_u32 s41, s41, s40")
    a(f"v_add_u32 v{vT0}, s41, v{vL16}")
    a(f"ds_read_b128 {vr(40)}, v{vT0}")
    a(f"ds_read_b128 {vr(44)}, v{vT0} offset:1024")
    a(f"v_and_b32 v{vT0}, 1, v3")
    a(f"v_lshlrev_b32 v{vT0}, 3, v{vT0}")
    a(f"v_lshlrev_b32 v52, 4, v3")
    a(f"v_lshl_add_u32 v52, v2, 10, v52")
    a(f"v_add_u32 v52, v52, v{vT0}")
    a(f"v_xor_b32 v53, 8, v52")
    a("s_lshl_b32 s40, s15, 14")
    a("s_lshl_b32 s41, s14, 7")
    a("s_add_u32 s40, s40, s41")
    a("s_lshl_b32 s41, s19, 6")
    a("s_add_u32 s40, s40, s41")
    a("s_waitcnt vmcnt(0) lgkmcnt(0)")
    OO = 48
    for tau in range(2):
        for h in range(2):
            hr = HR + tau * 2 + h
            a(f"v_lshlrev_b32 v{vT1}, 16, v{hr}")
            a(f"v_and_b32 v{vT2}, 0xffff0000, v{hr}")
            a(f"v_add_f32 v{vT1}, v{vT1}, v{ACC + tau*4 + 2*h}")
            a(f"v_add_f32 v{vT2}, v{vT2}, v{ACC + tau*4 + 2*h + 1}")
            a(f"v_add_f32 v{vT1}, v{vT1}, v{40 + tau*4 + 2*h}")
            a(f"v_add_f32 v{vT2}, v{vT2}, v{40 + tau*4 + 2*h + 1}")
            a(f"v_cvt_pk_bf16_f32 v{OO + tau*2 + h}, v{vT1}, v{vT2}")
    a(f"buffer_store_dwordx2 {vr(OO, 2)}, v52, s[24:27], s40 offen")
    a(f"buffer_store_dwordx2 {vr(OO + 2, 2)}, v53, s[24:27], s40 offen")
    stamp(a, "k4", 5)
    if "k4" in STAMPS:
        a("s_waitcnt vmcnt(0)")
    stamp(a, "k4", 6)
    stamp_flush(a, "k4", 3, 7)
    a("K4_END:")
    a("s_endpgm")
    return a.text(), 120


def main():
    outp = sys.argv[1]
    ks = [("k1_kernel", gen_k1, 256, 512, 163840),
          ("k2_kernel", gen_k2, 256, 512, 98304),
          ("k3_kernel", gen_k3, 256, 512, 98304),
          ("k4_kernel", gen_k4, 256, 512, 12 * 8192 + 16384)]
    hdr = open('sequential_preLN__linear_attn_block__dense_activation_mish__prompt.s.ref').read().split('\n')
    s = ""
    for line in hdr:
        if line.startswith('; Override'):
            break
        s += line + "\n"
    for name, fn, g, b, lds in ks:
        s += f"; @launch kernel={name} grid=({g},1,1) block=({b},1,1) lds={lds}\n"
    s += '.amdgcn_target "amdgcn-amd-amdhsa--gfx950"\n.text\n'
    descs = ""
    for name, fn, g, b, lds in ks:
        body, nv = fn()
        s += kernel_header(name) + body
        descs += kernel_desc(name, nv)
    s += '.section .rodata,"a"\n' + descs
    open(outp, 'w').write(s)


main()
```

```python
import sys, os
from asmlib import Asm, DSQ, kernel_header, kernel_desc

KVACC = 0
KV_HEAD = 1088
CS1 = 0x9000
PQ = 0x10000
HH = PQ + 0x200000
ACT = HH + 0x200000
STAT2 = ACT + 128 * 43 * 1024
CNT = STAT2 + 0x40000
WS_USED = CNT + 0x4000

LOG2E = 0x3FB8AA3B
ONES_BF16 = 0x3F803F80
ENV = lambda k, d: int(os.environ.get(k, d))
K3_LA = ENV("K3_LA", 5)
K4_LA = ENV("K4_LA", 8)
K1_INIT = ENV("K1_INIT", 2)
P3_INIT = ENV("P3_INIT", 3)
STAMP_WAVE = ENV("STAMP_WAVE", 0)
STAMPS = os.environ.get("STAMPS", "")
STAMP_OFF = 0xA00000


def stamp(a, kname, i):
    if kname not in STAMPS:
        return
    a(f"s_memrealtime s[64:65]")
    a("s_waitcnt lgkmcnt(0)")
    a(f"v_mov_b32 v{240+i}, s64")


def sstamp(a, i):
    if "kf" not in STAMPS:
        return
    a(f"s_memrealtime s[64:65]")
    a("s_waitcnt lgkmcnt(0)")
    a(f"s_mov_b32 s{82+i}, s64")


def stamp_flush(a, kname, kidx, n):
    if kname not in STAMPS:
        return
    a("s_waitcnt vmcnt(0)")
    stamp(a, kname, n - 1)
    a("s_cmp_lg_u32 s12, 0")
    a.branch(f"s_cbranch_scc1 {kname}_NOSTAMP")
    a("s_mov_b32 s96, s10\ns_and_b32 s97, s11, 0xffff\ns_mov_b32 s98, 0x2000000\ns_mov_b32 s99, 0x20000")
    a("s_mov_b64 exec, 1")
    a(f"s_lshl_b32 s63, s2, 7")
    a(f"s_add_u32 s63, s63, {STAMP_OFF + kidx*0x10000}")
    a("v_mov_b32 v4, 0")
    for i in range(n):
        a(f"v_mov_b32 v2, v{240+i}")
        a(f"v_mov_b32 v3, 0")
        a(f"buffer_store_dwordx2 v[2:3], v4, s[96:99], s63 offen offset:{i*8}")
    a(f"{kname}_NOSTAMP:")


def srd(a, s, base_lo, base_hi, nbytes):
    a(f"s_mov_b32 s{s}, s{base_lo}")
    a(f"s_and_b32 s{s+1}, s{base_hi}, 0xffff")
    a(f"s_mov_b32 s{s+2}, {nbytes}")
    a(f"s_mov_b32 s{s+3}, 0x20000")


def srd_off(a, s, base_lo, base_hi, soff, nbytes):
    a(f"s_add_u32 s{s}, s{base_lo}, s{soff}")
    a(f"s_addc_u32 s{s+1}, s{base_hi}, 0")
    a(f"s_and_b32 s{s+1}, s{s+1}, 0xffff")
    a(f"s_mov_b32 s{s+2}, {nbytes}")
    a(f"s_mov_b32 s{s+3}, 0x20000")


def vr(base, n=4):
    return f"v[{base}:{base+n-1}]"


def preamble(a):
    a("v_lshrrev_b32 v4, 6, v0")
    a("v_and_b32 v1, 63, v0")
    a("v_readfirstlane_b32 s12, v4")
    a("v_and_b32 v2, 15, v1")
    a("v_lshrrev_b32 v3, 4, v1")


class VQ:
    def __init__(self, a):
        self.a = a; self.q = []

    def add(self, tag, n=1):
        self.q.extend([tag] * n)

    def wait_le(self, X):
        idx = max([i for i, t in enumerate(self.q) if isinstance(t, int) and t <= X], default=-1)
        self.a(f"s_waitcnt vmcnt({min(63, len(self.q) - 1 - idx)})")

    def wait_tag(self, tag):
        idx = max([i for i, t in enumerate(self.q) if t == tag], default=-1)
        self.a(f"s_waitcnt vmcnt({min(63, len(self.q) - 1 - idx)})")


def stream3(a, vq, nsteps, loads, ntiles, rd, mm, CH, LA, ring=None, setup=None, on_chunk=None):
    pending = list(loads)
    dsq = DSQ(a)

    def issue_one():
        need, fn = pending.pop(0); fn(); vq.add(need)

    while pending and pending[0][0] <= LA - 1:
        issue_one()
    if setup:
        setup()
    nch = (nsteps + CH - 1) // CH
    for c in range(nch):
        s0 = c * CH; s1 = min(nsteps, s0 + CH)
        vq.wait_le(min(nsteps - 1, s1))
        a("s_barrier")
        if on_chunk:
            on_chunk(c)
        limit = s1 - 1 + LA
        if c == 0:
            for t in range(ntiles):
                rd(dsq, 0, t)
        for s in range(s0, s1):
            for t in range(ntiles):
                dsq.wait((s, t))
                mm(s, t)
                if s + 1 < nsteps:
                    rd(dsq, s + 1, t)
                if pending and pending[0][0] <= limit:
                    if ring is not None:
                        assert pending[0][0] < c * CH + ring
                    issue_one()
        while pending and pending[0][0] <= limit:
            if ring is not None:
                assert pending[0][0] < c * CH + ring
            issue_one()
    assert not pending


def b_read_bases(a, vdst, vT0, vT1, vT2, mode):
    a(f"v_lshrrev_b32 v{vT0}, 2, v2")
    a(f"v_and_b32 v{vT1}, 3, v1")
    a(f"v_and_b32 v{vT2}, 1, v3")
    for rd in range(2):
        d = vdst + rd * 2
        if mode == 'nat':
            a(f"v_lshl_add_u32 v{d}, v3, 2, v{vT0}")
            if rd:
                a(f"v_add_u32 v{d}, 16, v{d}")
            a(f"v_lshlrev_b32 v{d}, 6, v{d}")
            a(f"v_xor_b32 v{d+1}, v{vT1}, v{vT2}")
        else:
            a(f"v_xor_b32 v{d+1}, {rd}, v{vT2}")
            a(f"v_lshl_add_u32 v{d}, v{d+1}, 2, v{vT0}")
            a(f"v_lshl_add_u32 v{d}, v3, 3, v{d}")
            a(f"v_lshlrev_b32 v{d}, 6, v{d}")
            a(f"v_xor_b32 v{d+1}, v{vT1}, v{d+1}")
        a(f"v_lshl_add_u32 v{d}, v{d+1}, 4, v{d}")
        a(f"v_and_b32 v{d+1}, 1, v1")
        a(f"v_lshl_add_u32 v{d}, v{d+1}, 3, v{d}")
        a(f"v_xor_b32 v{d+1}, 8, v{d}")


def b_dma_voff(a, vdst, vT0, vT1, pitch):
    a(f"v_lshrrev_b32 v{vT0}, 2, v1")
    a(f"v_mul_u32_u24 v{vT0}, {pitch}, v{vT0}")
    a(f"v_and_b32 v{vT1}, 1, v3")
    a(f"v_and_b32 v{vdst}, 3, v1")
    a(f"v_xor_b32 v{vT1}, v{vT1}, v{vdst}")
    a(f"v_lshl_add_u32 v{vdst}, v{vT1}, 4, v{vT0}")


def prefetch(a, srdbase, soff, nkb, vaddr, vtmp):
    for i in range(nkb):
        if i % 4 == 0 and i:
            a(f"s_add_u32 s{soff}, s{soff}, 4096")
        a(f"buffer_load_dwordx4 {vr(vtmp)}, v{vaddr}, s[{srdbase}:{srdbase+3}], s{soff} offen offset:{(i%4)*1024}")


def gen_k1():
    a = Asm()
    vq = VQ(a)
    B_BASE = 65536
    SCR = 0
    CS_OFF = SCR
    ST_OFF = SCR + 2048
    PQX_OFF = SCR + 4096
    KVX_OFF = SCR + 12288
    ZX_OFF = SCR + 20480
    CW_OFF = SCR + 22528

    a("s_cmp_ge_u32 s2, 256")
    a("s_cbranch_scc1 K1_END")
    stamp(a, "k1", 0)
    a("s_load_dwordx4 s[4:7], s[0:1], 0")
    a("s_load_dwordx4 s[8:11], s[0:1], 64")
    a("s_load_dwordx2 s[50:51], s[0:1], 16")
    a("s_load_dwordx2 s[52:53], s[0:1], 32")
    preamble(a)
    a("s_and_b32 s40, s2, 7")
    a("s_lshr_b32 s17, s2, 3")
    a("s_lshr_b32 s13, s40, 1")
    a("s_lshl_b32 s13, s13, 3")
    a("s_and_b32 s42, s17, 7")
    a("s_add_u32 s13, s13, s42")
    a("s_and_b32 s14, s40, 1")
    a("s_lshl_b32 s14, s14, 2")
    a("s_lshr_b32 s42, s17, 3")
    a("s_add_u32 s14, s14, s42")
    a("s_lshr_b32 s15, s12, 2")
    a("s_and_b32 s16, s12, 3")
    a("s_add_u32 s18, s17, s42")
    a("s_and_b32 s18, s18, 7")
    vA, vB, vAr0, vAr1, vBr, vT0, vT1, vT2 = 5, 6, 8, 9, 10, 12, 13, 14
    a(f"v_lshrrev_b32 v{vT0}, 3, v1")
    a(f"s_lshl_b32 s40, s12, 3")
    a(f"v_add_u32 v{vT0}, s40, v{vT0}")
    a(f"v_lshlrev_b32 v{vT0}, 10, v{vT0}")
    a(f"s_and_b32 s41, s12, 1")
    a(f"s_lshl_b32 s41, s41, 2")
    a(f"v_add_u32 v{vT1}, s41, v3")
    a(f"v_and_b32 v{vT2}, 7, v1")
    a(f"v_xor_b32 v{vT1}, v{vT1}, v{vT2}")
    a(f"v_lshl_add_u32 v{vA}, v{vT1}, 4, v{vT0}")
    a(f"v_lshrrev_b32 v{vT0}, 3, v1")
    a(f"v_add_u32 v{vT0}, s40, v{vT0}")
    a(f"v_mul_u32_u24 v{vT0}, 3072, v{vT0}")
    a(f"v_and_b32 v{vT1}, 1, v3")
    a(f"v_lshlrev_b32 v{vT1}, 1, v{vT1}")
    a(f"v_add_u32 v{vT1}, s41, v{vT1}")
    a(f"v_xor_b32 v{vT1}, v{vT1}, v{vT2}")
    a(f"v_lshl_add_u32 v{vB}, v{vT1}, 4, v{vT0}")
    a("s_lshl_b32 s44, s13, 16")
    a("s_lshl_b32 s45, s14, 7")
    a("s_lshl_b32 s46, s12, 10")
    a("s_waitcnt lgkmcnt(0)")
    srd(a, 20, 4, 5, 2048 * 1024)
    srd(a, 24, 6, 7, 512 * 3072)

    srd(a, 32, 8, 9, 256)
    a("s_cmp_eq_u32 s12, 7")
    a("s_cselect_b32 s38, 256, 0")
    a("s_cmp_lt_u32 s2, 8")
    a("s_cselect_b32 s38, s38, 0")
    a("s_mov_b32 s36, s8\ns_and_b32 s37, s9, 0xffff\ns_mov_b32 s39, 0x20000")
    a(f"s_mul_i32 s40, s2, {4*KV_HEAD}")
    srd_off(a, 80, 10, 11, 40, 0)
    a("s_cmp_lg_u32 s38, 0")
    a(f"s_cselect_b32 s82, {4*KV_HEAD}, 0")
    a(f"v_lshlrev_b32 v{vT0}, 4, v1")
    for i in range(4):
        a(f"v_mov_b32 v{152+i}, 0")
    a("s_mov_b32 s40, 4096")
    for i in range(4):
        a(f"buffer_store_dwordx4 v[152:155], v{vT0}, s[80:83], 0 offen offset:{i*1024} sc1")
    a(f"buffer_store_dwordx4 v[152:155], v{vT0}, s[80:83], s40 offen sc1")
    vq.add('z', 5)
    a(f"s_mov_b32 s40, {CNT}")
    srd_off(a, 60, 10, 11, 40, 0)
    a("s_cmp_eq_u32 s12, 7")
    a("s_cselect_b32 s62, 0x4000, 0")
    a("s_cmp_eq_u32 s2, 8")
    a("s_cselect_b32 s62, s62, 0")
    a(f"v_lshlrev_b32 v{vT1}, 8, v1")
    a(f"buffer_store_dword v152, v{vT1}, s[60:63], 0 offen")
    vq.add('z')
    a("s_lshl_b32 s40, s14, 2")
    a("v_mov_b32 v15, s40")
    a("s_lshl_b32 s40, s2, 2")
    a("v_mov_b32 v22, s40")

    def chunk_ops(c):
        def fa():
            a(f"s_add_u32 s47, s18, {c}")
            a("s_and_b32 s47, s47, 7")
            a("s_lshl_b32 s48, s47, 7")
            a("s_add_u32 s48, s48, s44")
            a(f"s_add_u32 m0, s46, {c*8192}")
            a(f"s_mul_i32 s49, s47, {64*3072}")
            a(f"buffer_load_dwordx4 v{vA}, s[20:23], s48 offen lds")
            a("s_add_u32 s49, s49, s45")
            vq.add(c)
        def fb(seg):
            def f():
                a(f"s_add_u32 m0, s46, {B_BASE + (c % 4)*24576 + seg*8192 - seg*1024}")
                a(f"buffer_load_dwordx4 v{vB}, s[24:27], s49 offen offset:{seg*1024} lds")
                vq.add(c)
            return f
        return [fa, fb(0), fb(1), fb(2)]

    for c in range(K1_INIT):
        for f in chunk_ops(c):
            f()
    srd(a, 28, 10, 11, WS_USED)
    srd(a, 84, 50, 51, 512 * 1024)
    srd(a, 88, 52, 53, 512 * 2752)
    srd(a, 92, 52, 53, 512 * 2752)
    a("s_cmp_ge_u32 s2, 43")
    a("s_cselect_b32 s94, 0, s94")
    vONE = 16
    ACC = 32; FA = 56; FB = 72
    S1 = 132; S2 = 136; CSA = 140; CSW = 152
    a(f"s_lshl_b32 s40, s15, 12")
    a(f"v_lshrrev_b32 v{vT0}, 1, v2")
    a(f"v_xor_b32 v{vT0}, v{vT0}, v3")
    a(f"v_lshlrev_b32 v{vT0}, 4, v{vT0}")
    a(f"v_lshl_add_u32 v{vT0}, v2, 7, v{vT0}")
    a(f"v_add_u32 v{vAr0}, s40, v{vT0}")
    a(f"v_xor_b32 v{vAr1}, 64, v{vAr0}")
    a(f"v_lshrrev_b32 v{vT0}, 2, v2")
    a(f"v_lshl_add_u32 v{vT1}, v3, 3, v{vT0}")
    a(f"v_lshlrev_b32 v{vT1}, 7, v{vT1}")
    a(f"v_lshrrev_b32 v{vT0}, 1, v{vT0}")
    a(f"v_and_b32 v{vT2}, 1, v3")
    a(f"v_lshl_add_u32 v{vT0}, v{vT2}, 1, v{vT0}")
    a(f"v_lshlrev_b32 v{vT0}, 1, v{vT0}")
    a(f"v_bfe_u32 v{vT2}, v1, 1, 1")
    a(f"s_lshl_b32 s40, s16, 1")
    a(f"v_add_u32 v{vT2}, s40, v{vT2}")
    a(f"v_xor_b32 v{vT0}, v{vT0}, v{vT2}")
    a(f"v_lshl_add_u32 v{vT1}, v{vT0}, 4, v{vT1}")
    a(f"v_and_b32 v{vT0}, 1, v1")
    a(f"v_lshl_add_u32 v{vT1}, v{vT0}, 3, v{vT1}")
    a(f"v_add_u32 v{vBr}, {B_BASE}, v{vT1}")
    a(f"v_add_u32 v{vBr+1}, {B_BASE + 49152}, v{vT1}")
    for i in range(4):
        a(f"v_mov_b32 v{vONE+i}, {ONES_BF16:#x}")
    for i in range(20):
        a(f"v_mov_b32 v{S1+i}, 0")
    for i in range(24):
        a(f"v_mov_b32 v{ACC+i}, 0")
    a("s_and_b32 s54, s16, 1")
    a("s_lshr_b32 s55, s16, 1")
    stamp(a, "k1", 1)
    dsq = DSQ(a)

    def rd_a(kk, rt):
        buf = kk & 1; c = kk >> 1
        va = vAr0 if (kk & 1) == 0 else vAr1
        dsq.issue((kk, 'a', rt), f"ds_read_b128 {vr(FA + buf*8 + rt*4)}, v{va} offset:{c*8192 + rt*2048}")

    def rd_b(kk, seg):
        buf = kk & 1; c = kk >> 1; st = c % 4
        for rd in range(2):
            off = (st & 1) * 24576 + seg * 8192 + (kk & 1) * 4096 + rd * 512
            dsq.issue((kk, 'b', seg), f"ds_read_b64_tr_b16 {vr(FB + buf*12 + seg*4 + rd*2, 2)}, v{vBr + (st >> 1)} offset:{off}")

    def read_frags(kk):
        rd_a(kk, 0); rd_b(kk, 0); rd_a(kk, 1); rd_b(kk, 1); rd_b(kk, 2)

    fill = []

    def F():
        if fill:
            fill.pop(0)()

    def compute(kk, nxt):
        buf = kk & 1
        fa = [FA + buf * 8 + rt * 4 for rt in range(2)]
        fb = [FB + buf * 12 + seg * 4 for seg in range(3)]
        dsq.wait((kk, 'b', 0))
        a(f"v_mfma_f32_16x16x32_bf16 {vr(ACC)}, {vr(fb[0])}, {vr(fa[0])}, {vr(ACC)}")
        if nxt: rd_a(kk + 1, 0)
        dsq.wait((kk, 'a', 1))
        a(f"v_mfma_f32_16x16x32_bf16 {vr(ACC + 4)}, {vr(fb[0])}, {vr(fa[1])}, {vr(ACC + 4)}")
        if nxt: rd_b(kk + 1, 0)
        F()
        dsq.wait((kk, 'b', 1))
        a(f"v_mfma_f32_16x16x32_bf16 {vr(ACC + 8)}, {vr(fa[0])}, {vr(fb[1])}, {vr(ACC + 8)}")
        if nxt: rd_a(kk + 1, 1)
        a(f"v_mfma_f32_16x16x32_bf16 {vr(ACC + 12)}, {vr(fa[1])}, {vr(fb[1])}, {vr(ACC + 12)}")
        if nxt: rd_b(kk + 1, 1)
        F()
        dsq.wait((kk, 'b', 2))
        a(f"v_mfma_f32_16x16x32_bf16 {vr(ACC + 16)}, {vr(fa[0])}, {vr(fb[2])}, {vr(ACC + 16)}")
        a(f"v_mfma_f32_16x16x32_bf16 {vr(ACC + 20)}, {vr(fa[1])}, {vr(fb[2])}, {vr(ACC + 20)}")
        if nxt: rd_b(kk + 1, 2)
        F()
        a(f"s_cmp_lg_u32 s55, {kk & 1}")
        a.emit(f"s_cbranch_scc1 K1_SU{kk}")
        a(f"s_cmp_lg_u32 s54, 0")
        a.emit(f"s_cbranch_scc1 K1_ST{kk}")
        a(f"v_mfma_f32_16x16x32_bf16 {vr(S1)}, {vr(vONE)}, {vr(fa[0])}, {vr(S1)}")
        a(f"v_mfma_f32_16x16x32_bf16 {vr(S2)}, {vr(fa[0])}, {vr(fa[0])}, {vr(S2)}")
        a.emit(f"s_branch K1_SU{kk}")
        a.raw(f"K1_ST{kk}:")
        a(f"v_mfma_f32_16x16x32_bf16 {vr(S1)}, {vr(vONE)}, {vr(fa[1])}, {vr(S1)}")
        a(f"v_mfma_f32_16x16x32_bf16 {vr(S2)}, {vr(fa[1])}, {vr(fa[1])}, {vr(S2)}")
        a.raw(f"K1_SU{kk}:")
        a(f"s_cmp_lg_u32 s15, {kk & 1}")
        a.emit(f"s_cbranch_scc1 K1_SK{kk}")
        for seg in range(3):
            a(f"v_mfma_f32_16x16x32_bf16 {vr(CSA + seg*4)}, {vr(vONE)}, {vr(fb[seg])}, {vr(CSA + seg*4)}")
        a.raw(f"K1_SK{kk}:")

    for c in range(8):
        vq.wait_le(min(7, c + 1) if c > 0 else 0)
        a("s_barrier")
        stamp(a, "k1", 2 + c)
        if c == 0:
            for cc in range(K1_INIT, 4):
                fill.extend(chunk_ops(cc))
            read_frags(0)
            compute(0, True)
            if K1_INIT < 2:
                while fill and not any(t == 1 for t in vq.q[-1:]) : F()
            vq.wait_le(1)
            a("s_barrier")
            compute(1, True)
            while fill: F()
            continue
        if c == 1:
            a("v_mov_b32 v21, 1")
            a("s_mov_b64 exec, 1")
            a("buffer_atomic_add v21, v22, s[36:39], 0 offen offset:64")
            a("s_mov_b64 exec, -1")
            vq.add('fl')
        if c <= 4:
            fill.extend(chunk_ops(c + 3))
        if c == 5:
            a(f"v_lshrrev_b32 v{vT0}, 2, v1")
            a(f"v_mul_u32_u24 v{vT0}, 2752, v{vT0}")
            a(f"v_and_b32 v{vT1}, 3, v1")
            a(f"v_lshl_add_u32 v{vT0}, v{vT1}, 4, v{vT0}")
            a(f"s_mul_i32 s40, s12, {64*2752}")
            a("s_lshl_b32 s41, s2, 6")
            a("s_add_u32 s40, s40, s41")
            for i in range(4):
                a(f"buffer_load_dwordx4 {vr(CSW + i*4)}, v{vT0}, s[92:95], s40 offen")
                a(f"s_add_u32 s40, s40, {16*2752}")
            vq.add('cw', 4)
        if c == 6:
            a("s_mov_b64 exec, 1")
            a("buffer_load_dword v4, v15, s[32:35], 0 offen offset:64 sc1")
            a("s_mov_b64 exec, -1")
            vq.add('poll')
            a(f"v_lshlrev_b32 v{vT0}, 4, v1")
            a("s_lshl_b32 s40, s12, 11")
            a("s_lshl_b32 s42, s17, 14")
            a("s_add_u32 s40, s40, s42")
            prefetch(a, 84, 40, 2, vT0, 128)
            vq.add('pf', 2)
        compute(2 * c, True)
        compute(2 * c + 1, c < 7)
        while fill: F()
    a.flush_hazards()
    stamp(a, "k1", 10)
    SR = 56; SL = 72
    a(f"v_and_b32 v{vT0}, 3, v2")
    a(f"v_cmp_eq_u32 vcc, 1, v{vT0}")
    a(f"v_cndmask_b32 v{S1+1}, v{S2}, v{S2+1}, vcc")
    a(f"v_cmp_eq_u32 vcc, 2, v{vT0}")
    a(f"v_cndmask_b32 v{S1+1}, v{S1+1}, v{S2+2}, vcc")
    a(f"v_cmp_eq_u32 vcc, 3, v{vT0}")
    a(f"v_cndmask_b32 v{S1+1}, v{S1+1}, v{S2+3}, vcc")
    a("s_lshl_b32 s41, s15, 1")
    a("s_add_u32 s41, s41, s54")
    a("s_lshl_b32 s41, s41, 1")
    a("s_add_u32 s41, s41, s55")
    a("s_lshl_b32 s41, s41, 7")
    a(f"s_add_u32 s41, s41, {ST_OFF}")
    a(f"v_lshlrev_b32 v{vT1}, 3, v2")
    a(f"v_add_u32 v{vT1}, s41, v{vT1}")
    a("s_mov_b32 exec_lo, 0x00f0000f")
    a("s_mov_b32 exec_hi, 0xf0000f00")
    a(f"ds_write_b64 v{vT1}, {vr(S1, 2)}")
    a("s_mov_b64 exec, -1")
    a(f"s_mul_i32 s40, s16, 384")
    a(f"s_lshl_b32 s41, s15, 2")
    a(f"s_add_u32 s41, s41, s40")
    a(f"v_lshlrev_b32 v{vT0}, 3, v2")
    a(f"v_add_u32 v{vT1}, s41, v{vT0}")
    for seg in range(3):
        a(f"ds_write_b32 v{vT1}, v{CSA + seg*4} offset:{CS_OFF + seg*128}")
    vq.wait_tag('cw')
    a("s_cmp_ge_u32 s2, 43")
    a.branch("s_cbranch_scc1 K1_NOCS")
    for p in range(4):
        a(f"v_mov_b32 v{116+p}, 0")
        a(f"v_cmp_eq_u32 vcc, {2*p}, v2")
        a(f"v_mov_b32 v124, 0x3f80")
        a(f"v_cndmask_b32 v{116+p}, v{116+p}, v124, vcc")
        a(f"v_cmp_eq_u32 vcc, {2*p+1}, v2")
        a(f"v_mov_b32 v124, 0x3f800000")
        a(f"v_cndmask_b32 v{116+p}, v{116+p}, v124, vcc")
    a(f"v_mfma_f32_16x16x32_bf16 v[120:123], v[116:119], {vr(CSW)}, 0")
    for i in range(1, 4):
        a(f"v_mfma_f32_16x16x32_bf16 v[120:123], v[116:119], {vr(CSW + i*4)}, v[120:123]")
    for r in range(4):
        a(f"v_add_f32_dpp v{120+r}, v{120+r}, v{120+r} row_ror:4 row_mask:0xf bank_mask:0xf")
    for r in range(4):
        a(f"v_add_f32_dpp v{120+r}, v{120+r}, v{120+r} row_ror:8 row_mask:0xf bank_mask:0xf")
    a(f"v_and_b32 v124, 3, v2")
    a(f"v_lshlrev_b32 v124, 5, v124")
    a(f"v_and_b32 v125, 1, v3")
    a(f"v_lshl_add_u32 v124, v125, 4, v124")
    a(f"v_lshrrev_b32 v125, 1, v3")
    a(f"v_lshl_add_u32 v124, v125, 10, v124")
    a("s_lshl_b32 s42, s12, 7")
    a("v_add_u32 v124, s42, v124")
    a(f"ds_write_b128 v124, v[120:123] offset:{CW_OFF}")
    a("K1_NOCS:")
    a("s_waitcnt lgkmcnt(0)")
    a("s_barrier")
    a("s_cmp_ge_u32 s2, 43")
    a.branch("s_cbranch_scc1 K1_NOCS2")
    a("s_cmp_lg_u32 s12, 1")
    a.branch("s_cbranch_scc1 K1_NOCS2")
    a("s_mov_b32 exec_hi, 0")
    a("v_lshlrev_b32 v124, 2, v1")
    for w in range(8):
        a(f"ds_read_b32 v{112+w}, v124 offset:{CW_OFF + w*128}")
    a("s_lshl_b32 s42, s2, 7")
    a(f"s_add_u32 s42, s42, {CS1}")
    a("s_waitcnt lgkmcnt(0)")
    for w in range(1, 8):
        a(f"v_add_f32 v112, v112, v{112+w}")
    a("buffer_store_dword v112, v124, s[28:31], s42 offen")
    a("s_mov_b64 exec, -1")
    a("K1_NOCS2:")
    CK = 100
    a(f"v_add_u32 v{vT1}, s40, v{vT0}")
    a(f"ds_read_b64 {vr(CK, 2)}, v{vT1} offset:{CS_OFF + 128}")
    a(f"ds_read_b64 {vr(CK+2, 2)}, v{vT1} offset:{CS_OFF + 256}")
    a(f"v_lshlrev_b32 v{vT2}, 5, v3")
    a(f"v_add_u32 v{vT2}, s40, v{vT2}")
    a(f"ds_read_b128 {vr(CK+4)}, v{vT2} offset:{CS_OFF}")
    a(f"ds_read_b128 {vr(CK+8)}, v{vT2} offset:{CS_OFF + 16}")
    SP = 112
    a(f"s_lshl_b32 s41, s15, 9")
    a(f"v_lshlrev_b32 v{vT1}, 5, v3")
    a(f"v_add_u32 v{vT1}, s41, v{vT1}")
    a(f"v_add_u32 v{vT2}, s41, v{vT0}")
    for rt in range(2):
        a(f"ds_read_b128 {vr(SR + rt*8)}, v{vT1} offset:{ST_OFF + rt*256}")
        a(f"ds_read_b128 {vr(SR + rt*8 + 4)}, v{vT1} offset:{ST_OFF + rt*256 + 16}")
        a(f"ds_read_b128 {vr(SP + rt*8)}, v{vT1} offset:{ST_OFF + rt*256 + 128}")
        a(f"ds_read_b128 {vr(SP + rt*8 + 4)}, v{vT1} offset:{ST_OFF + rt*256 + 144}")
        a(f"ds_read_b64 {vr(SL + rt*2, 2)}, v{vT2} offset:{ST_OFF + rt*256}")
        a(f"ds_read_b64 {vr(SL + 4 + rt*2, 2)}, v{vT2} offset:{ST_OFF + rt*256 + 128}")
    a("s_mov_b32 s42, 0x3b000000\ns_mov_b32 s43, 0x3b000000")
    a("s_mov_b32 s47, 0x3727c5ac")
    a("s_waitcnt lgkmcnt(0)")
    a(f"v_add_f32 v{CK}, v{CK}, v{CK+1}")
    a(f"v_add_f32 v{CK+2}, v{CK+2}, v{CK+3}")
    for r in range(4):
        a(f"v_add_f32 v{CK+4+2*r}, v{CK+4+2*r}, v{CK+5+2*r}")
    pairs = [(SR + 2 * i, SP + 2 * i) for i in range(8)] + [(SL, SL + 4), (SL + 2, SL + 6)]
    for p, q in pairs:
        a(f"v_pk_add_f32 {vr(p,2)}, {vr(p,2)}, {vr(q,2)}")
        a(f"v_pk_mul_f32 {vr(p,2)}, {vr(p,2)}, s[42:43]")
        a(f"v_fma_f32 v{p+1}, -v{p}, v{p}, v{p+1}")
        a(f"v_max_f32 v{p+1}, 0, v{p+1}")
        a(f"v_add_f32 v{p+1}, s47, v{p+1}")
    for p, q in pairs:
        a(f"v_rsq_f32 v{p+1}, v{p+1}")
    a(f"s_mov_b32 s42, {LOG2E:#x}")
    a("s_mov_b32 s43, 0x358637bd")

    def phi4(xs, ts):
        for x, t in zip(xs, ts):
            a(f"v_mul_f32 v{t}, s42, v{x}")
        for x, t in zip(xs, ts):
            a(f"v_exp_f32 v{t}, v{t}")
        for x, t in zip(xs, ts):
            a(f"v_cmp_lt_f32 vcc, 0, v{x}")
            a(f"v_add_f32 v{x}, 1.0, v{x}")
            a(f"v_cndmask_b32 v{x}, v{t}, v{x}, vcc")
            a(f"v_add_f32 v{x}, s43, v{x}")

    T = 112
    for rt in range(2):
        for r in range(4):
            x = ACC + 8 + rt * 4 + r
            a(f"v_fma_f32 v{x}, -v{SR + rt*8 + 2*r}, v{CK}, v{x}")
            a(f"v_mul_f32 v{x}, v{SR + rt*8 + 2*r + 1}, v{x}")
            x = ACC + 16 + rt * 4 + r
            a(f"v_fma_f32 v{x}, -v{SR + rt*8 + 2*r}, v{CK+2}, v{x}")
            a(f"v_mul_f32 v{x}, v{SR + rt*8 + 2*r + 1}, v{x}")
        phi4([ACC + 8 + rt * 4 + r for r in range(4)], [T + r for r in range(4)])
    PQP, PK, VV = 88, 92, 96
    for rt in range(2):
        for h in range(2):
            a(f"v_cvt_pk_bf16_f32 v{PK + rt*2 + h}, v{ACC + 8 + rt*4 + 2*h}, v{ACC + 8 + rt*4 + 2*h + 1}")
            a(f"v_cvt_pk_bf16_f32 v{VV + rt*2 + h}, v{ACC + 16 + rt*4 + 2*h}, v{ACC + 16 + rt*4 + 2*h + 1}")
    KVR, ZR = 40, 44
    a(f"v_mfma_f32_16x16x32_bf16 {vr(KVR)}, {vr(PK)}, {vr(VV)}, 0")
    a(f"v_mfma_f32_16x16x32_bf16 {vr(ZR)}, {vr(PK)}, {vr(vONE)}, 0")
    for rt in range(2):
        for r in range(4):
            x = ACC + rt * 4 + r
            a(f"v_fma_f32 v{x}, -v{SL + rt*2}, v{CK + 4 + 2*r}, v{x}")
            a(f"v_mul_f32 v{x}, v{SL + rt*2 + 1}, v{x}")
        phi4([ACC + rt * 4 + r for r in range(4)], [T + r for r in range(4)])
    for rt in range(2):
        for h in range(2):
            a(f"v_cvt_pk_bf16_f32 v{PQP + rt*2 + h}, v{ACC + rt*4 + 2*h}, v{ACC + rt*4 + 2*h + 1}")
    a(f"s_lshl_b32 s40, s15, 12")
    a(f"s_lshl_b32 s41, s55, 10")
    a(f"s_add_u32 s40, s40, s41")
    a(f"s_lshl_b32 s41, s54, 3")
    a(f"s_add_u32 s41, s41, s40")
    a(f"v_lshlrev_b32 v{vT0}, 4, v1")
    a(f"v_add_u32 v{vT1}, s41, v{vT0}")
    a(f"ds_write_b64 v{vT1}, {vr(PQP, 2)} offset:{PQX_OFF}")
    a(f"ds_write_b64 v{vT1}, {vr(PQP+2, 2)} offset:{PQX_OFF + 2048}")
    a(f"s_lshl_b32 s41, s16, 1")
    a(f"s_add_u32 s41, s41, s15")
    a(f"s_lshl_b32 s42, s41, 10")
    a(f"v_add_u32 v{vT1}, s42, v{vT0}")
    a(f"ds_write_b128 v{vT1}, {vr(KVR)} offset:{KVX_OFF}")
    a(f"s_lshl_b32 s42, s41, 6")
    a(f"v_lshlrev_b32 v{vT2}, 4, v3")
    a(f"v_add_u32 v{vT2}, s42, v{vT2}")
    a(f"ds_write_b128 v{vT2}, {vr(ZR)} offset:{ZX_OFF}")
    a("s_cmp_lg_u32 s12, 0")
    a.branch("s_cbranch_scc1 K1_NOPOLL")
    a("s_mov_b64 exec, 1")
    a("s_mov_b32 s43, 0")
    vq.wait_tag('poll')
    a("v_readfirstlane_b32 s42, v4")
    a("s_cmp_lg_u32 s42, 0")
    a.branch("s_cbranch_scc1 K1_POLLX")
    a(f"v_mov_b32 v4, 0")
    a(f"buffer_atomic_add v4, v15, s[32:35], 0 offen offset:64 sc0")
    a("K1_POLL:")
    a("s_waitcnt vmcnt(0)")
    a("v_readfirstlane_b32 s42, v4")
    a("s_add_u32 s43, s43, 1")
    a("s_cmp_lg_u32 s42, 0")
    a.branch("s_cbranch_scc1 K1_POLLX")
    a("s_cmp_gt_u32 s43, 0x4000")
    a.branch("s_cbranch_scc1 K1_POLLX")
    a(f"v_mov_b32 v4, 0")
    a(f"buffer_atomic_add v4, v15, s[32:35], 0 offen offset:64 sc0")
    a.branch("s_branch K1_POLL")
    a("K1_POLLX:")
    a("s_mov_b64 exec, -1")
    a("K1_NOPOLL:")
    a("s_waitcnt lgkmcnt(0)")
    a("s_barrier")
    stamp(a, "k1", 11)
    a(f"s_lshl_b32 s41, s54, 11")
    a(f"s_add_u32 s41, s41, s40")
    a(f"v_add_u32 v{vT1}, s41, v{vT0}")
    a(f"ds_read_b128 {vr(56)}, v{vT1} offset:{PQX_OFF}")
    a(f"v_lshrrev_b32 v{vT1}, 8, v0")
    a(f"v_and_b32 v{vT2}, 255, v0")
    a(f"v_lshlrev_b32 v4, 2, v{vT2}")
    a(f"v_lshl_add_u32 v4, v{vT1}, 11, v4")
    for hh in range(2):
        for wm in range(2):
            a(f"ds_read_b32 v{60+hh*2+wm}, v4 offset:{KVX_OFF + hh*4096 + wm*1024}")
    a(f"s_mul_i32 s41, s14, {4*KV_HEAD}")
    a(f"v_mul_u32_u24 v{vT1}, {KV_HEAD}, v{vT1}")
    a(f"v_lshl_add_u32 v{vT1}, v{vT2}, 2, v{vT1}")
    a(f"s_lshl_b32 s42, s13, 2")
    a(f"s_lshl_b32 s43, s15, 1")
    a(f"s_add_u32 s42, s42, s43")
    a(f"s_add_u32 s42, s42, s54")
    a(f"s_lshl_b32 s42, s42, 4")
    a(f"s_lshl_b32 s43, s14, 1")
    a(f"s_add_u32 s42, s42, s43")
    a(f"s_add_u32 s42, s42, s55")
    a(f"s_lshl_b32 s42, s42, 10")
    a(f"s_add_u32 s42, s42, {PQ}")
    a("s_waitcnt lgkmcnt(4)")
    a(f"buffer_store_dwordx4 {vr(56)}, v{vT0}, s[28:31], s42 offen")
    a("s_waitcnt lgkmcnt(0)")
    a("v_add_f32 v60, v60, v61")
    a("v_add_f32 v62, v62, v63")
    a(f"buffer_atomic_add_f32 v60, v{vT1}, s[28:31], s41 offen")
    a(f"buffer_atomic_add_f32 v62, v{vT1}, s[28:31], s41 offen offset:{2*KV_HEAD}")
    a("s_cmp_lg_u32 s12, 0")
    a.branch("s_cbranch_scc1 K1_END")
    a(f"v_lshlrev_b32 v4, 2, v2")
    a(f"v_lshl_add_u32 v4, v3, 7, v4")
    a(f"ds_read_b32 v64, v4 offset:{ZX_OFF}")
    a(f"ds_read_b32 v65, v4 offset:{ZX_OFF + 64}")
    a(f"v_mul_u32_u24 v{vT1}, {KV_HEAD}, v3")
    a(f"v_lshl_add_u32 v{vT1}, v2, 2, v{vT1}")
    a("s_waitcnt lgkmcnt(0)")
    a("v_add_f32 v64, v64, v65")
    a(f"buffer_atomic_add_f32 v64, v{vT1}, s[28:31], s41 offen offset:1024")
    stamp(a, "k1", 12)
    stamp_flush(a, "k1", 0, 14)
    a("K1_END:")
    a("s_endpgm")
    return a.text(), 168


def gen_kf():
    a = Asm()
    vq = VQ(a)
    KVL = 0; ZL = 16384; ZZ = ZL + 1024; XL = 24576; WOL = 32768; W1H = [98304, 49152]; RED2 = 147456
    RED3 = 0; CBL = 147456; W2R = 49152; RED4 = 0; OT = 16384
    HK = 240; vBI = 244; vCS = 245
    a("s_cmp_ge_u32 s2, 256")
    a("s_cbranch_scc1 KF_END")
    sstamp(a, 0)
    a("s_load_dwordx2 s[4:5], s[0:1], 0")
    a("s_load_dwordx2 s[6:7], s[0:1], 16")
    a("s_load_dwordx4 s[68:71], s[0:1], 32")
    a("s_load_dwordx4 s[72:75], s[0:1], 48")
    a("s_load_dwordx2 s[10:11], s[0:1], 72")
    preamble(a)
    a("s_and_b32 s3, s2, 7")
    a("s_lshr_b32 s17, s2, 3")
    a("s_lshl_b32 s13, s3, 2")
    a("s_and_b32 s42, s17, 3")
    a("s_add_u32 s13, s13, s42")
    a("s_lshr_b32 s14, s17, 2")
    a("s_and_b32 s18, s12, 3")
    a("s_lshr_b32 s19, s12, 2")
    a("s_lshl_b32 s15, s13, 2")
    a("s_add_u32 s15, s15, s18")
    a("s_lshl_b32 s76, s3, 1")
    a("s_and_b32 s42, s17, 1")
    a("s_add_u32 s76, s76, s42")
    a("s_lshr_b32 s77, s17, 1")
    a("s_mul_i32 s77, s77, 349528")
    a("s_lshr_b32 s77, s77, 17")
    vL16, vZ, vB, vT0, vT1, vT2, vX = 5, 6, 7, 8, 9, 10, 11
    vB1 = 246
    vBR = 12
    KVF = 16; ZF = 32; PQF = 48; ACC = 88
    a(f"v_lshlrev_b32 v{vL16}, 4, v1")
    a(f"v_mul_u32_u24 v{vZ}, {KV_HEAD}, v3")
    a(f"v_lshl_add_u32 v{vZ}, v2, 2, v{vZ}")
    b_dma_voff(a, vB, vT0, vT1, 1024)
    b_dma_voff(a, vB1, vT0, vT1, 2752)
    a(f"v_lshrrev_b32 v{vT0}, 3, v1")
    a(f"v_and_b32 v{vT1}, 7, v1")
    a(f"v_lshlrev_b32 v{vT1}, 4, v{vT1}")
    a(f"v_lshl_add_u32 v{vX}, v{vT0}, 10, v{vT1}")
    a(f"s_mul_i32 s47, s12, {4*KV_HEAD}")
    a(f"s_lshl_b32 s40, s15, 14")
    a(f"s_lshl_b32 s41, s19, 10")
    a(f"s_add_u32 s40, s40, s41")
    a(f"s_add_u32 s40, s40, {PQ}")
    a("s_lshr_b32 s41, s12, 1")
    a("s_and_b32 s42, s12, 1")
    a("s_lshl_b32 s43, s14, 7")
    a("s_lshl_b32 s44, s41, 14")
    a("s_add_u32 s44, s44, s43")
    a("s_lshl_b32 s45, s42, 6")
    a("s_add_u32 s44, s44, s45")
    a("s_lshl_b32 s45, s42, 15")
    a("s_lshl_b32 s46, s41, 10")
    a("s_add_u32 s45, s45, s46")
    a("s_waitcnt lgkmcnt(0)")
    srd(a, 28, 10, 11, WS_USED)
    srd(a, 24, 6, 7, 512 * 1024)
    for i in range(4):
        a(f"buffer_load_dwordx4 {vr(KVF + i*4)}, v{vL16}, s[28:31], s47 offen offset:{i*KV_HEAD}")
    a(f"buffer_load_dword v{ZF}, v{vZ}, s[28:31], s47 offen offset:1024")
    vq.add('kv', 5)
    for i in range(8):
        a(f"buffer_load_dwordx4 {vr(PQF + i*4)}, v{vL16}, s[28:31], s40 offen offset:{(i%2)*2048}")
        if i % 2:
            a("s_add_u32 s40, s40, 4096")
        a(f"s_add_u32 m0, s45, {WOL + i*4096}")
        a(f"s_add_u32 s46, s44, {i*65536}")
        a(f"buffer_load_dwordx4 v{vB}, s[24:27], s46 offen lds")
        vq.add('h0' if i < 4 else 'h1', 2)
    srd(a, 20, 4, 5, 2048 * 1024)
    a("s_lshl_b32 s40, s13, 16")
    a("s_lshl_b32 s41, s12, 13")
    a("s_add_u32 s40, s40, s41")
    a("s_add_u32 s40, s40, s43")
    a("s_lshl_b32 s41, s12, 10")
    a(f"s_add_u32 m0, s41, {XL}")
    a(f"buffer_load_dwordx4 v{vX}, s[20:23], s40 offen lds")
    vq.add('h1')
    a("s_lshl_b32 s43, s77, 6")
    for j in range(3):
        a(f"s_add_u32 s40, s12, {8*j}")
        a(f"s_mul_i32 s41, s40, 43691")
        a(f"s_lshr_b32 s41, s41, 17")
        a(f"s_mul_i32 s42, s41, 3")
        a(f"s_sub_u32 s42, s40, s42")
        a(f"s_mul_i32 s{54+2*j}, s41, {16*2752}")
        a(f"s_lshl_b32 s44, s42, 6")
        a(f"s_add_u32 s{54+2*j}, s{54+2*j}, s44")
        a(f"s_add_u32 s{54+2*j}, s{54+2*j}, s43")
        a(f"s_lshl_b32 s{55+2*j}, s42, 14")
        a(f"s_lshl_b32 s44, s41, 10")
        a(f"s_add_u32 s{55+2*j}, s{55+2*j}, s44")
    srd(a, 36, 68, 69, 512 * 2752)

    def ld_w1(half, tag):
        for g2 in range(2):
            grp = half * 2 + g2
            for j in range(3):
                a(f"s_add_u32 m0, s{55+2*j}, {W1H[half] + g2*8192}")
                a(f"s_add_u32 s49, s{54+2*j}, {grp*128*2752}")
                a(f"buffer_load_dwordx4 v{vB1}, s[36:39], s49 offen lds")
                vq.add(tag)

    b_read_bases(a, vBR, vT0, vT1, vT2, 'nat')
    a("s_lshl_b32 s41, s19, 11")
    a(f"s_add_u32 s41, s41, {WOL}")
    for i in range(4):
        a(f"v_add_u32 v{vBR+i}, s41, v{vBR+i}")
    for i in range(16):
        a(f"v_mov_b32 v{ACC+i}, 0")
    a(f"v_mov_b32 v{vT0}, 0")
    a(f"v_and_b32 v{vT1}, 255, v0")
    a(f"v_lshlrev_b32 v{vT1}, 2, v{vT1}")
    a(f"ds_write_b32 v{vT1}, v{vT0} offset:{ZZ}")
    sstamp(a, 1)
    vq.wait_tag('kv')
    a(f"s_lshl_b32 s40, s12, 11")
    a(f"v_add_u32 v{vT0}, s40, v{vL16}")
    for i in range(4):
        k = KVF + i * 4
        a(f"v_cvt_pk_bf16_f32 v{36 + i*2}, v{k}, v{k+1}")
        a(f"v_cvt_pk_bf16_f32 v{36 + i*2 + 1}, v{k+2}, v{k+3}")
    a(f"ds_write_b128 v{vT0}, v[36:39] offset:{KVL}")
    a(f"ds_write_b128 v{vT0}, v[40:43] offset:{KVL + 1024}")
    a(f"v_cvt_pk_bf16_f32 v{ZF}, v{ZF}, v{ZF}")
    a(f"s_lshl_b32 s40, s12, 7")
    a(f"v_lshlrev_b32 v{vT1}, 1, v1")
    a(f"v_add_u32 v{vT1}, s40, v{vT1}")
    a(f"ds_write_b16 v{vT1}, v{ZF} offset:{ZL}")
    vq.wait_tag('h0')
    a("s_waitcnt lgkmcnt(0)")
    a("s_barrier")
    sstamp(a, 2)
    a(f"s_lshl_b32 s41, s19, 10")
    a(f"v_add_u32 v{vT0}, s41, v{vL16}")
    a(f"s_lshl_b32 s41, s19, 6")
    a(f"v_lshlrev_b32 v{vT1}, 3, v3")
    a(f"v_add_u32 v{vT1}, s41, v{vT1}")
    a(f"v_and_b32 v{vT2}, 1, v1")
    a(f"v_lshlrev_b32 v{vT2}, 10, v{vT2}")
    a(f"v_add_u32 v6, v{vT1}, v{vT2}")
    a(f"v_xor_b32 v{vT2}, 1024, v{vT2}")
    a(f"v_add_u32 v11, v{vT1}, v{vT2}")
    a("s_mov_b32 s48, 0x358637bd")
    KH = 104; ZP = 136; NUM = 168; DEN = 16; WF = 104
    dsq = DSQ(a)

    def rdkv(s_):
        dsq.issue(('kv', s_), f"ds_read_b128 {vr(KH + s_*4)}, v{vT0} offset:{KVL + s_*2048}")
        dsq.issue(('kv', s_), f"ds_read_b64 {vr(ZP + s_*4, 2)}, v6 offset:{ZL + s_*128}")
        dsq.issue(('kv', s_), f"ds_read_b64 {vr(ZP + s_*4 + 2, 2)}, v11 offset:{ZL + 32 + s_*128}")

    def nd(s_):
        k0 = KH + s_ * 4
        dsq.wait(('kv', s_))
        p = PQF + s_ * 4
        a(f"v_mfma_f32_16x16x16_bf16 {vr(NUM + s_*8)}, {vr(k0, 2)}, {vr(p, 2)}, 0")
        a(f"v_mfma_f32_16x16x16_bf16 {vr(NUM + s_*8 + 4)}, {vr(k0+2, 2)}, {vr(p+2, 2)}, 0")
        a(f"v_mfma_f32_16x16x32_bf16 {vr(DEN + s_*4)}, {vr(ZP + s_*4)}, {vr(p)}, 0")

    def omake(s_):
        d = DEN + s_ * 4; n = NUM + s_ * 8; o = PQF + s_ * 4
        a(f"v_add_f32 v{d}, s48, v{d}")
        a(f"v_add_f32 v{d+1}, s48, v{d+1}")
        a(f"v_rcp_f32 v{d}, v{d}")
        a(f"v_rcp_f32 v{d+1}, v{d+1}")
        for h in range(2):
            for r in range(2):
                a(f"v_pk_mul_f32 {vr(n + h*4 + 2*r, 2)}, {vr(n + h*4 + 2*r, 2)}, {vr(d, 2)} op_sel:[0,{h}] op_sel_hi:[1,{h}]")
        for h in range(2):
            a(f"v_cvt_pk_bf16_f32 v{o + h*2}, v{n + h*4}, v{n + h*4 + 1}")
            a(f"v_cvt_pk_bf16_f32 v{o + h*2 + 1}, v{n + h*4 + 2}, v{n + h*4 + 3}")

    def rd_wo(s_, t):
        b = s_ & 1
        u = t >> 1; tau = t & 1
        for rd in range(2):
            dsq.issue(('w', s_, t), f"ds_read_b64_tr_b16 {vr(WF + b*16 + t*4 + rd*2, 2)}, v{vBR + rd*2 + tau} offset:{u*32768 + s_*4096}")

    for s_ in range(4):
        rdkv(s_)
    for s_ in range(4):
        rdkv(s_ + 4)
        nd(s_)
    vq.wait_tag('h1')
    for s_ in range(4, 8):
        nd(s_)
    a("s_barrier")
    for t in range(4):
        rd_wo(0, t)
    ld_w1(0, 'w1a')
    srd_off(a, 32, 70, 71, 43, 192)
    a(f"v_lshlrev_b32 v84, 1, v0")
    a(f"buffer_load_ushort v{vBI}, v84, s[32:35], 0 offen")
    a("s_lshl_b32 s44, s43, 1")
    a(f"s_add_u32 s44, s44, {CS1}")
    srd_off(a, 32, 10, 11, 44, 384)
    a(f"v_lshlrev_b32 v85, 2, v0")
    a(f"buffer_load_dword v{vCS}, v85, s[32:35], 0 offen")
    vq.add('sm', 2)
    a(f"s_mul_i32 s44, s17, {22016}")
    a("s_mul_i32 s45, s12, 3072")
    a("s_add_u32 s44, s44, s45")
    a(f"s_add_u32 s44, s44, {256*2752}")
    prefetch(a, 36, 44, 3, vL16, 248)
    srd(a, 32, 72, 73, 1376 * 1024)
    a(f"s_mul_i32 s44, s17, {43*1024}")
    a("s_mul_i32 s45, s12, 6144")
    a("s_add_u32 s44, s44, s45")
    prefetch(a, 32, 44, 6, vL16, 248)
    vq.add('pf', 9)

    for s_ in range(8):
        omake(s_)
    for s_ in range(8):
        for t in range(4):
            dsq.wait(('w', s_, t))
            a(f"v_mfma_f32_16x16x32_bf16 {vr(ACC + t*4)}, {vr(WF + (s_&1)*16 + t*4)}, {vr(PQF + s_*4)}, {vr(ACC + t*4)}")
            if s_ < 7:
                rd_wo(s_ + 1, t)
    sstamp(a, 3)
    a("s_lshl_b32 s40, s18, 12")
    a(f"s_add_u32 s40, s40, {RED2}")
    a("s_xor_b32 s41, s19, 1")
    a("s_lshl_b32 s41, s41, 11")
    a("s_add_u32 s41, s41, s40")
    a(f"v_add_u32 v{vT0}, s41, v{vL16}")
    a("s_cmp_eq_u32 s19, 0")
    a.branch("s_cbranch_scc0 KF2_R1")
    a(f"ds_write_b128 v{vT0}, {vr(ACC+8)}")
    a(f"ds_write_b128 v{vT0}, {vr(ACC+12)} offset:1024")
    a.branch("s_branch KF2_R2")
    a("KF2_R1:")
    a(f"ds_write_b128 v{vT0}, {vr(ACC)}")
    a(f"ds_write_b128 v{vT0}, {vr(ACC+4)} offset:1024")
    for i in range(0, 8, 2):
        a(f"v_pk_mov_b32 {vr(ACC+i,2)}, {vr(ACC+8+i,2)}, {vr(ACC+8+i,2)} op_sel:[0,1]")
    a("KF2_R2:")
    XR = 80
    a("s_lshl_b32 s41, s18, 11")
    a("s_lshl_b32 s42, s19, 6")
    a("s_add_u32 s41, s41, s42")
    a(f"v_and_b32 v{vT1}, 1, v3")
    a(f"v_lshlrev_b32 v{vT1}, 3, v{vT1}")
    a(f"v_lshl_add_u32 v{vT1}, v3, 4, v{vT1}")
    a(f"v_lshl_add_u32 v{vT1}, v2, 7, v{vT1}")
    a(f"v_add_u32 v{vT1}, s41, v{vT1}")
    a(f"v_xor_b32 v{vT2}, 8, v{vT1}")
    a(f"ds_read_b64 {vr(XR,2)}, v{vT1} offset:{XL}")
    a(f"ds_read_b64 {vr(XR+2,2)}, v{vT2} offset:{XL}")
    a("s_waitcnt lgkmcnt(0)")
    a("s_barrier")
    a("s_lshl_b32 s41, s19, 11")
    a("s_add_u32 s41, s41, s40")
    a(f"v_add_u32 v{vT0}, s41, v{vL16}")
    a(f"ds_read_b128 {vr(16)}, v{vT0}")
    a(f"ds_read_b128 {vr(20)}, v{vT0} offset:1024")
    ld_w1(1, 'w1b')
    a("s_lshl_b32 s40, s15, 4")
    a("s_lshl_b32 s41, s14, 1")
    a("s_add_u32 s41, s41, s19")
    a("s_add_u32 s40, s40, s41")
    a("s_lshl_b32 s40, s40, 10")
    a(f"s_add_u32 s40, s40, {HH}")
    a("v_mov_b32 v28, 0\nv_mov_b32 v29, 0\nv_mov_b32 v30, 1.0")
    for i in range(4):
        a(f"v_lshlrev_b32 v{32+2*i}, 16, v{XR+i}")
        a(f"v_and_b32 v{33+2*i}, 0xffff0000, v{XR+i}")
        a(f"v_pk_add_f32 {vr(32+2*i,2)}, {vr(32+2*i,2)}, {vr(ACC+2*i,2)}")
    a("s_waitcnt lgkmcnt(0)")
    for i in range(4):
        a(f"v_pk_add_f32 {vr(32+2*i,2)}, {vr(32+2*i,2)}, {vr(16+2*i,2)}")
        a(f"v_cvt_pk_bf16_f32 v{HK+i}, v{32+2*i}, v{33+2*i}")
    a(f"buffer_store_dwordx4 {vr(HK)}, v{vL16}, s[28:31], s40 offen sc1")
    for i in range(4):
        a(f"v_lshlrev_b32 v{vT1}, 16, v{HK+i}")
        a(f"v_and_b32 v{vT2}, 0xffff0000, v{HK+i}")
        a(f"v_add_f32 v28, v28, v{vT1}")
        a(f"v_fma_f32 v29, v{vT1}, v{vT1}, v29")
        a(f"v_add_f32 v28, v28, v{vT2}")
        a(f"v_fma_f32 v29, v{vT2}, v{vT2}, v29")
    a("v_mfma_f32_16x16x4_f32 v[32:35], v30, v28, 0")
    a("v_mfma_f32_16x16x4_f32 v[36:39], v30, v29, 0")
    a("s_lshl_b32 s40, s15, 11")
    a("s_bfe_u32 s42, s41, 0x10001")
    a("s_lshl_b32 s42, s42, 10")
    a("s_add_u32 s40, s40, s42")
    a("s_lshr_b32 s42, s41, 2")
    a("s_lshl_b32 s42, s42, 8")
    a("s_add_u32 s40, s40, s42")
    a("s_and_b32 s42, s41, 1")
    a("s_lshl_b32 s42, s42, 3")
    a("s_add_u32 s40, s40, s42")
    a(f"s_add_u32 s40, s40, {STAT2}")
    a("v_mov_b32 v33, v36")
    a("s_mov_b64 exec, 0xffff")
    a(f"buffer_store_dwordx2 v[32:33], v{vL16}, s[28:31], s40 offen sc1")
    a("s_mov_b64 exec, -1")
    sstamp(a, 4)

    def gsync(name, sig_sreg_expr, wait_sreg_expr, base, between=None):
        a("s_waitcnt vmcnt(0)")
        vq.q = []
        a("s_barrier")
        a("s_cmp_lg_u32 s12, 0")
        a.branch(f"s_cbranch_scc1 {name}_S")
        a(sig_sreg_expr)
        a("s_lshl_b32 s40, s40, 8")
        a(f"s_add_u32 s40, s40, {CNT + base}")
        a("v_mov_b32 v6, 0\nv_mov_b32 v11, 1")
        a("s_mov_b64 exec, 1")
        a("buffer_atomic_add v11, v6, s[28:31], s40 offen")
        a("s_mov_b64 exec, -1")
        a(f"{name}_S:")
        if between:
            between()
        a("s_cmp_lg_u32 s12, 0")
        a.branch(f"s_cbranch_scc1 {name}_W")
        a("s_mov_b64 exec, 1")
        a(wait_sreg_expr)
        a("s_lshl_b32 s40, s40, 8")
        a(f"s_add_u32 s40, s40, {CNT + base}")
        a("s_mov_b32 s43, 0")
        a(f"{name}_P:")
        a("buffer_load_dword v11, v6, s[28:31], s40 offen sc1")
        a("s_add_u32 s43, s43, 1")
        a("s_waitcnt vmcnt(0)")
        a("v_readfirstlane_b32 s41, v11")
        a("s_cmp_ge_u32 s41, 16")
        a.branch(f"s_cbranch_scc1 {name}_X")
        a("s_cmp_lt_u32 s43, 0x40000")
        a.branch(f"s_cbranch_scc1 {name}_P")
        a(f"{name}_X:")
        a("s_mov_b64 exec, -1")
        a(f"{name}_W:")
        a("s_waitcnt lgkmcnt(0)")
        a("s_barrier")

    vBR3 = 12; vONEF = 21
    BI = 24; CR = 48; SP = 72; HF = 80; ACC3 = 144; WF3 = 192

    def p3_setup():
        a(f"v_lshlrev_b32 v{vBI}, 16, v{vBI}")
        a(f"v_lshlrev_b32 v{vT1}, 2, v0")
        a(f"v_add_u32 v{vT1}, {CBL}, v{vT1}")
        a(f"ds_write_b32 v{vT1}, v{vCS}")
        a(f"ds_write_b32 v{vT1}, v{vBI} offset:2048")
        b_read_bases(a, vBR3, vT0, vT1, vT2, 'perm')
        a("s_lshl_b32 s41, s19, 11")
        for i in range(4):
            a(f"v_add_u32 v{vBR3+i}, s41, v{vBR3+i}")
            a(f"v_add_u32 v{vBR3+4+i}, {W1H[0]}, v{vBR3+i}")
            a(f"v_add_u32 v{vBR3+i}, {W1H[1]}, v{vBR3+i}")
        a(f"v_mov_b32 v{vONEF}, 1.0")
        for i in range(48):
            a(f"v_mov_b32 v{ACC3+i}, 0")
        a("s_lshl_b32 s78, s76, 3")
        a("s_lshl_b32 s40, s18, 1")
        a("s_add_u32 s78, s78, s40")
        a("s_add_u32 s16, s78, s19")
        a("s_lshl_b32 s46, s78, 14")
        a("s_lshl_b32 s40, s19, 10")
        a("s_add_u32 s46, s46, s40")
        a(f"s_add_u32 s46, s46, {HH}")
        a("s_add_u32 s48, s46, 16384")

    gsync("KFS2", "s_lshr_b32 s40, s13, 1", "s_mov_b32 s40, s76", 0, p3_setup)
    sstamp(a, 5)

    def mkA(s_, rt):
        sr = 46 if rt == 0 else 48
        a(f"buffer_load_dwordx4 {vr(HF + s_*8 + rt*4)}, v{vL16}, s[28:31], s{sr} offen offset:{(s_%2)*2048} sc1")
        if s_ % 2 == 1:
            a(f"s_add_u32 s{sr}, s{sr}, 4096")
        vq.add(s_)

    def rd_w(dsq, s_, t):
        b = s_ & 1
        u = t >> 1; tau = t & 1
        half = s_ >> 2
        for rd in range(2):
            base = vBR3 + rd * 2 + tau + (4 if half == 0 else 0)
            dsq.issue((s_, t), f"ds_read_b64_tr_b16 {vr(WF3 + b*24 + t*4 + rd*2, 2)}, v{base} offset:{u*16384 + (s_ & 3)*4096}")

    for s_ in range(P3_INIT):
        for rt in range(2):
            mkA(s_, rt)
    pend = [(s_, rt) for s_ in range(P3_INIT, 8) for rt in range(2)]
    dsq = DSQ(a)
    for t in range(6):
        rd_w(dsq, 0, t)
    for s_ in range(8):
        vq.wait_le(s_)
        for t in range(6):
            dsq.wait((s_, t))
            for rt in range(2):
                a(f"v_mfma_f32_16x16x32_bf16 {vr(ACC3 + rt*24 + t*4)}, {vr(WF3 + (s_&1)*24 + t*4)}, {vr(HF + s_*8 + rt*4)}, {vr(ACC3 + rt*24 + t*4)}")
            if s_ + 1 < 8:
                rd_w(dsq, s_ + 1, t)
            if pend and t < 4:
                mkA(*pend.pop(0))
        if s_ == 3:
            a(f"s_lshl_b32 s44, s16, 11")
            a(f"s_add_u32 s44, s44, {STAT2}")
            a(f"buffer_load_dwordx4 {vr(SP)}, v{vL16}, s[28:31], s44 offen sc1")
            a(f"buffer_load_dwordx4 {vr(SP+4)}, v{vL16}, s[28:31], s44 offen offset:1024 sc1")
            vq.add('sp', 2)
    sstamp(a, 6)
    a("s_mul_i32 s40, s18, 12288")
    a("s_xor_b32 s41, s19, 1")
    a("s_mul_i32 s41, s41, 6144")
    a("s_add_u32 s41, s41, s40")
    a(f"v_add_u32 v{vT0}, s41, v{vL16}")
    a("s_cmp_eq_u32 s19, 0")
    a.branch("s_cbranch_scc0 KF3_R1")
    for t in range(6):
        a(f"ds_write_b128 v{vT0}, {vr(ACC3 + 24 + t*4)} offset:{RED3 + t*1024}")
    a.branch("s_branch KF3_R2")
    a("KF3_R1:")
    for t in range(6):
        a(f"ds_write_b128 v{vT0}, {vr(ACC3 + t*4)} offset:{RED3 + t*1024}")
    for i in range(0, 24, 2):
        a(f"v_pk_mov_b32 {vr(ACC3+i,2)}, {vr(ACC3+24+i,2)}, {vr(ACC3+24+i,2)} op_sel:[0,1]")
    a("KF3_R2:")
    ST = 192
    vq.wait_tag('sp')
    a(f"v_pk_add_f32 {vr(SP,2)}, {vr(SP,2)}, {vr(SP+2,2)}")
    a(f"v_pk_add_f32 {vr(SP+4,2)}, {vr(SP+4,2)}, {vr(SP+6,2)}")
    a(f"v_pk_add_f32 {vr(SP,2)}, {vr(SP,2)}, {vr(SP+4,2)}")
    a(f"v_mfma_f32_16x16x4_f32 {vr(ST)}, v{vONEF}, v{SP}, 0")
    a(f"v_mfma_f32_16x16x4_f32 {vr(ST+4)}, v{vONEF}, v{SP+1}, 0")
    a("s_lshr_b32 s41, s12, 1")
    a("s_and_b32 s42, s12, 1")
    a("s_lshl_b32 s54, s41, 14")
    a("s_lshl_b32 s44, s42, 6")
    a("s_add_u32 s54, s54, s44")
    a("s_lshl_b32 s44, s14, 7")
    a("s_add_u32 s54, s54, s44")
    a("s_lshr_b32 s55, s41, 1")
    a("s_lshl_b32 s55, s55, 12")
    a("s_lshl_b32 s45, s42, 11")
    a("s_add_u32 s55, s55, s45")
    a("s_and_b32 s45, s41, 1")
    a("s_lshl_b32 s45, s45, 10")
    a("s_add_u32 s55, s55, s45")
    a(f"s_add_u32 s55, s55, {W2R}")
    srd(a, 20, 72, 73, 1376 * 1024)
    a("s_waitcnt lgkmcnt(0)")
    a("s_barrier")
    NS = 12; NA = 12

    def ldB4(s):
        a(f"s_add_u32 m0, s55, {(s % NS)*8192}")
        a(f"s_add_u32 s45, s54, {s*65536}")
        a(f"buffer_load_dwordx4 v{vB}, s[20:23], s45 offen lds")

    a("s_mul_i32 s41, s19, 6144")
    a("s_add_u32 s41, s41, s40")
    a(f"v_add_u32 v{vT0}, s41, v{vL16}")
    a(f"v_and_b32 v{vT1}, 1, v3")
    a(f"v_lshlrev_b32 v{vT1}, 4, v{vT1}")
    a(f"v_lshl_add_u32 v{vT1}, v3, 5, v{vT1}")
    a(f"v_add_u32 v{vT1}, {CBL}, v{vT1}")
    a(f"v_xor_b32 v{vT2}, 16, v{vT1}")
    PR = 80
    dsq = DSQ(a)
    m = ST; q = ST + 4
    for t in range(6):
        b = vT1 if (t & 1) == 0 else vT2
        dsq.issue(t, f"ds_read_b128 {vr(PR + t*4)}, v{vT0} offset:{RED3 + t*1024}")
        dsq.issue(t, f"ds_read_b128 {vr(CR + t*4)}, v{b} offset:{(t>>1)*128}")
        dsq.issue(t, f"ds_read_b128 {vr(BI + t*4)}, v{b} offset:{2048 + (t>>1)*128}")
        if t == 3:
            a("s_mov_b32 s42, 0x3b000000")
            a("s_mov_b32 s43, 0x3727c5ac")
            a(f"v_mul_f32 v{m}, s42, v{m}")
            a(f"v_mul_f32 v{q}, s42, v{q}")
            a(f"v_fma_f32 v{q}, -v{m}, v{m}, v{q}")
            a(f"v_max_f32 v{q}, 0, v{q}")
            a(f"v_add_f32 v{q}, s43, v{q}")
            a(f"v_rsq_f32 v{q}, v{q}")
    a(f"s_mov_b32 s42, {LOG2E:#x}\ns_mov_b32 s43, {LOG2E:#x}")
    a("s_mov_b32 s56, 2.0\ns_mov_b32 s57, 2.0")
    a("s_mov_b32 s48, 0x41e6d4ca")
    a("s_mul_i32 s40, s16, 43")
    a("s_add_u32 s40, s40, s77")
    a("s_lshl_b32 s40, s40, 10")
    a(f"s_add_u32 s40, s40, {ACT}")
    T = 200; AO = 112
    for t in range(6):
        ldB4(2 * t); ldB4(2 * t + 1)
        dsq.wait(t)
        for h in range(2):
            x = ACC3 + t * 4 + 2 * h
            tb = T + h * 4
            a(f"v_pk_add_f32 {vr(x,2)}, {vr(x,2)}, {vr(PR + t*4 + 2*h,2)}")
            a(f"v_pk_fma_f32 {vr(x,2)}, {vr(CR + t*4 + 2*h,2)}, {vr(m,2)}, {vr(x,2)} op_sel_hi:[1,0,1] neg_lo:[0,1,0] neg_hi:[0,1,0]")
            a(f"v_pk_fma_f32 {vr(x,2)}, {vr(x,2)}, {vr(q,2)}, {vr(BI + t*4 + 2*h,2)} op_sel_hi:[1,0,1]")
            a(f"v_pk_mul_f32 {vr(tb,2)}, {vr(x,2)}, s[42:43]")
            a(f"v_min_f32 v{tb}, s48, v{tb}")
            a(f"v_min_f32 v{tb+1}, s48, v{tb+1}")
        for h in range(2):
            tb = T + h * 4
            a(f"v_exp_f32 v{tb}, v{tb}")
            a(f"v_exp_f32 v{tb+1}, v{tb+1}")
        for h in range(2):
            tb = T + h * 4
            a(f"v_pk_add_f32 {vr(tb+2,2)}, {vr(tb,2)}, s[56:57]")
            a(f"v_pk_mul_f32 {vr(tb,2)}, {vr(tb,2)}, {vr(tb+2,2)}")
            a(f"v_pk_add_f32 {vr(tb+2,2)}, {vr(tb,2)}, s[56:57]")
        for h in range(2):
            tb = T + h * 4
            a(f"v_rcp_f32 v{tb+2}, v{tb+2}")
            a(f"v_rcp_f32 v{tb+3}, v{tb+3}")
        for h in range(2):
            x = ACC3 + t * 4 + 2 * h
            tb = T + h * 4
            a(f"v_pk_mul_f32 {vr(tb,2)}, {vr(tb,2)}, {vr(x,2)}")
            a(f"v_pk_mul_f32 {vr(x,2)}, {vr(tb,2)}, {vr(tb+2,2)}")
            a(f"v_cvt_pk_bf16_f32 v{AO + t*2 + h}, v{x}, v{x+1}")
        if t & 1:
            u = t >> 1
            a(f"buffer_store_dwordx4 {vr(AO + u*4)}, v{vL16}, s[28:31], s40 offen offset:{u*1024} sc1")
    sstamp(a, 7)

    vBR4 = 12; ACC4 = 24; WF4 = 40; AF = 72

    def p4_setup():
        srd(a, 24, 74, 75, 2048 * 1024)
        b_read_bases(a, vBR4, vT0, vT1, vT2, 'perm')
        a("s_lshl_b32 s41, s19, 12")
        a(f"s_add_u32 s41, s41, {W2R}")
        for i in range(4):
            a(f"v_add_u32 v{vBR4+i}, s41, v{vBR4+i}")
            a(f"v_add_u32 v{vBR4+4+i}, 0x10000, v{vBR4+i}")
        for i in range(16):
            a(f"v_mov_b32 v{ACC4+i}, 0")
        a("s_mul_i32 s46, s15, 43")
        a("s_add_u32 s46, s46, s19")
        a("s_lshl_b32 s46, s46, 10")
        a(f"s_add_u32 s46, s46, {ACT}")

    gsync("KFS3", "s_mov_b32 s40, s76", "s_lshr_b32 s40, s13, 1", 0x2000, p4_setup)
    sstamp(a, 8)
    nsteps = 22

    def mkB(s):
        return lambda: ldB4(s)

    def mkA4(s):
        def f():
            if s % 2 == 0:
                a(f"s_add_u32 s47, s46, {s*2048}")
            a(f"buffer_load_dwordx4 {vr(AF + (s % NA)*4)}, v{vL16}, s[28:31], s47 offen offset:{(s%2)*2048} sc1")
        return f

    loads = []
    for s in range(nsteps):
        if s >= NS:
            loads.append((s, mkB(s)))
        loads.append((s, mkA4(s)))

    def rd_w4(dsq, s, t):
        b = s & 1
        u = t >> 1; tau = t & 1
        off = (s % NS) * 8192 + u * 2048
        for rd in range(2):
            base = vBR4 + rd * 2 + tau + 4 * (off >> 16)
            dsq.issue((s, t), f"ds_read_b64_tr_b16 {vr(WF4 + b*16 + t*4 + rd*2, 2)}, v{base} offset:{off & 0xffff}")

    def mm4(s, t):
        b = s & 1
        if s == nsteps - 1 and t == 0:
            a("s_waitcnt lgkmcnt(0)")
            a("s_cmp_lg_u32 s19, 0")
            a.branch("s_cbranch_scc1 KF4_SKIP")
        a(f"v_mfma_f32_16x16x32_bf16 {vr(ACC4 + t*4)}, {vr(WF4 + b*16 + t*4)}, {vr(AF + (s % NA)*4)}, {vr(ACC4 + t*4)}")
        if s == nsteps - 1 and t == 3:
            a("KF4_SKIP:")

    def onc(c):
        if c in (3, 7):
            sstamp(a, 9 + (c == 7))

    stream3(a, vq, nsteps, loads, 4, rd_w4, mm4, CH=2, LA=K4_LA, ring=NS, on_chunk=onc)
    sstamp(a, 11)
    a("s_lshl_b32 s40, s18, 12")
    a("s_xor_b32 s41, s19, 1")
    a("s_lshl_b32 s41, s41, 11")
    a("s_add_u32 s41, s41, s40")
    a(f"v_add_u32 v{vT0}, s41, v{vL16}")
    a("s_cmp_eq_u32 s19, 0")
    a.branch("s_cbranch_scc0 KF4_R1")
    a(f"ds_write_b128 v{vT0}, {vr(ACC4+8)} offset:{RED4}")
    a(f"ds_write_b128 v{vT0}, {vr(ACC4+12)} offset:{RED4 + 1024}")
    a.branch("s_branch KF4_R2")
    a("KF4_R1:")
    a(f"ds_write_b128 v{vT0}, {vr(ACC4)} offset:{RED4}")
    a(f"ds_write_b128 v{vT0}, {vr(ACC4+4)} offset:{RED4 + 1024}")
    for i in range(0, 8, 2):
        a(f"v_pk_mov_b32 {vr(ACC4+i,2)}, {vr(ACC4+8+i,2)}, {vr(ACC4+8+i,2)} op_sel:[0,1]")
    a("KF4_R2:")
    for i in range(4):
        a(f"v_lshlrev_b32 v{56+2*i}, 16, v{HK+i}")
        a(f"v_and_b32 v{57+2*i}, 0xffff0000, v{HK+i}")
        a(f"v_pk_add_f32 {vr(56+2*i,2)}, {vr(56+2*i,2)}, {vr(ACC4+2*i,2)}")
    a("s_waitcnt lgkmcnt(0)")
    a("s_barrier")
    a("s_lshl_b32 s41, s19, 11")
    a("s_add_u32 s41, s41, s40")
    a(f"v_add_u32 v{vT0}, s41, v{vL16}")
    a(f"ds_read_b128 {vr(40)}, v{vT0} offset:{RED4}")
    a(f"ds_read_b128 {vr(44)}, v{vT0} offset:{RED4 + 1024}")
    a("s_lshl_b32 s41, s12, 10")
    a(f"s_add_u32 s41, s41, {OT}")
    a(f"v_and_b32 v{vT1}, 1, v3")
    a(f"v_lshlrev_b32 v{vT1}, 3, v{vT1}")
    a(f"v_lshl_add_u32 v{vT1}, v3, 4, v{vT1}")
    a(f"v_lshl_add_u32 v{vT1}, v2, 6, v{vT1}")
    a(f"v_add_u32 v{vT1}, s41, v{vT1}")
    a(f"v_xor_b32 v{vT2}, 8, v{vT1}")
    a(f"v_add_u32 v52, s41, v{vL16}")
    a(f"v_lshrrev_b32 v53, 2, v1")
    a(f"v_and_b32 v54, 3, v1")
    a(f"v_lshlrev_b32 v54, 4, v54")
    a(f"v_lshl_add_u32 v53, v53, 10, v54")
    a("s_lshl_b32 s40, s15, 14")
    a("s_lshl_b32 s41, s14, 7")
    a("s_add_u32 s40, s40, s41")
    a("s_lshl_b32 s41, s19, 6")
    a("s_add_u32 s40, s40, s41")
    a("s_waitcnt lgkmcnt(0)")
    OO = 48
    for i in range(4):
        a(f"v_pk_add_f32 {vr(56+2*i,2)}, {vr(56+2*i,2)}, {vr(40+2*i,2)}")
        a(f"v_cvt_pk_bf16_f32 v{OO+i}, v{56+2*i}, v{57+2*i}")
    a(f"ds_write_b64 v{vT1}, {vr(OO,2)}")
    a(f"ds_write_b64 v{vT2}, {vr(OO+2,2)}")
    a("s_waitcnt lgkmcnt(0)")
    a(f"ds_read_b128 {vr(64)}, v52")
    a("s_waitcnt lgkmcnt(0)")
    a(f"buffer_store_dwordx4 {vr(64)}, v53, s[24:27], s40 offen")
    sstamp(a, 12)
    if "kf" in STAMPS:
        a("s_waitcnt vmcnt(0)")
        sstamp(a, 13)
        a(f"s_cmp_lg_u32 s12, {STAMP_WAVE}")
        a.branch("s_cbranch_scc1 KF_END")
        a("s_mov_b32 s36, s10\ns_and_b32 s37, s11, 0xffff\ns_mov_b32 s38, 0x2000000\ns_mov_b32 s39, 0x20000")
        a("s_mov_b64 exec, 1")
        a(f"s_lshl_b32 s63, s2, 7")
        a(f"s_add_u32 s63, s63, {STAMP_OFF + 0x10000}")
        a("v_mov_b32 v4, 0")
        for i in range(14):
            a(f"v_mov_b32 v2, s{82+i}")
            a(f"v_mov_b32 v3, 0")
            a(f"buffer_store_dwordx2 v[2:3], v4, s[36:39], s63 offen offset:{i*8}")
    a("KF_END:")
    a("s_endpgm")
    return a.text(), 252, 163840


def main():
    outp = sys.argv[1]
    hdr = open('sequential_preLN__linear_attn_block__dense_activation_mish__prompt.s.ref').read().split('\n')
    s = ""
    for line in hdr:
        if line.startswith('; Override'):
            break
        s += line + "\n"
    ks = []
    r = gen_k1(); ks.append(("k1_kernel", r[0], r[1], 163840))
    r = gen_kf(); ks.append(("kf_kernel", r[0], r[1], r[2]))
    for name, body, nv, lds in ks:
        s += f"; @launch kernel={name} grid=(256,1,1) block=(512,1,1) lds={lds}\n"
    s += '.amdgcn_target "amdgcn-amd-amdhsa--gfx950"\n.text\n'
    descs = ""
    for name, body, nv, lds in ks:
        s += kernel_header(name) + body
        descs += kernel_desc(name, 256 if STAMPS else nv)
    s += '.section .rodata,"a"\n' + descs
    open(outp, 'w').write(s)


main()
```
